```python
import torch

def _softmax(x, axis=-1):
    return torch.softmax(x, dim=axis)
def _gelu(x):
    return torch.nn.functional.gelu(x, approximate="tanh")
def _silu(x):
    return torch.nn.functional.silu(x)
def _sigmoid(x):
    return torch.sigmoid(x)
def _layernorm(x, axis=-1, eps=1e-5):
    m = x.mean(dim=axis, keepdim=True)
    v = x.var(dim=axis, keepdim=True, unbiased=False)
    return (x - m) / torch.sqrt(v + eps)
def _scatter_add(tgt, idx, src, axis=0):
    return tgt.clone().index_add_(axis, idx, src)
def _segment_sum(src, seg, n):
    out = torch.zeros((n,) + src.shape[1:], dtype=src.dtype)
    return out.index_add_(0, seg, src)
def _pad(x, pw):
    flat = tuple(v for pair in reversed(pw) for v in pair)
    return torch.nn.functional.pad(x, flat)

kernel_name = 'concat_heads__sliding_block_cached__gqa_block_cached__decode'

def setup_inputs():

    _w = (lambda a: (lambda t: t.to(torch.bfloat16) if t.is_floating_point() else t)(torch.as_tensor(a)))
    def _A_setup():
        B, Sq, D = 1, 1, 1024
        Hq, Hkv, Sk, Dh = 32, 4, 65536, 128
        assert Hq % Hkv == 0, (Hq, Hkv)
        return {
            "x": _w((lambda *s: torch.randn(*s, dtype=torch.bfloat16) * 0.2)(B, Sq, D)),
            "k_cache": _w((lambda *s: torch.randn(*s, dtype=torch.bfloat16) * 3.2)(B, Hkv, Sk, Dh)),
            "v_cache": _w((lambda *s: torch.randn(*s, dtype=torch.bfloat16) * 1.6)(B, Hkv, Sk, Dh)),
            "wq": _w((lambda *s: torch.randn(*s, dtype=torch.bfloat16) * 3.2)(D, Hq * Dh) * (D ** -0.5)),
            "wo": _w((lambda *s: torch.randn(*s, dtype=torch.bfloat16) * 1.6)(Hq * Dh, D) * ((Hq * Dh) ** -0.5)),
        }
    _A_in = _A_setup()

    def _B_setup():
        B, Sq, D = 1, 1, 1024
        Hq, Hkv, Sk, Dh = 32, 4, 65536, 128
        assert Hq % Hkv == 0, (Hq, Hkv)
        return {
            "x": _w((lambda *s: torch.randn(*s, dtype=torch.bfloat16) * 0.4)(B, Sq, D)),
            "k_cache": _w((lambda *s: torch.randn(*s, dtype=torch.bfloat16) * 3.2)(B, Hkv, Sk, Dh)),
            "v_cache": _w((lambda *s: torch.randn(*s, dtype=torch.bfloat16) * 0.8)(B, Hkv, Sk, Dh)),
            "wq": _w((lambda *s: torch.randn(*s, dtype=torch.bfloat16) * 3.2)(D, Hq * Dh) * (D ** -0.5)),
            "wo": _w((lambda *s: torch.randn(*s, dtype=torch.bfloat16) * 0.8)(Hq * Dh, D) * ((Hq * Dh) ** -0.5)),
        }
    _B_in = _B_setup()

    return {
        "A_x": _A_in["x"],
        "A_k_cache": _A_in["k_cache"],
        "A_v_cache": _A_in["v_cache"],
        "A_wq": _A_in["wq"],
        "A_wo": _A_in["wo"],
        "B_x": _B_in["x"],
        "B_k_cache": _B_in["k_cache"],
        "B_v_cache": _B_in["v_cache"],
        "B_wq": _B_in["wq"],
        "B_wo": _B_in["wo"],
    }

def reference(A_x, A_k_cache, A_v_cache, A_wq, A_wo, B_x, B_k_cache, B_v_cache, B_wq, B_wo):
    def _A_ref(x, k_cache, v_cache, wq, wo):
        B, Sq, D = x.shape
        Hq, Dh = 32, 128
        Hkv, Sk = k_cache.shape[1], k_cache.shape[2]
        W = min(4096, max(256, Sk // 4))
        rep = Hq // Hkv
        q = (lambda x, *d: x.permute(*d))((x @ wq).reshape(B, Sq, Hq, Dh), 0, 2, 1, 3)
        k = (lambda x, n, axis: torch.repeat_interleave(x, n, dim=axis))(k_cache[:, :, Sk - W:, :], rep, axis=1)
        v = (lambda x, n, axis: torch.repeat_interleave(x, n, dim=axis))(v_cache[:, :, Sk - W:, :], rep, axis=1)
        scores = torch.einsum("bhqd,bhkd->bhqk", q, k) * (Dh ** -0.5)
        p = _softmax(scores, axis=-1)
        o = torch.einsum("bhqk,bhkd->bhqd", p, v)
        return (lambda x, *d: x.permute(*d))(o, 0, 2, 1, 3).reshape(B, Sq, Hq * Dh) @ wo

    def _B_ref(x, k_cache, v_cache, wq, wo):
        B, Sq, D = x.shape
        Hq, Dh = 32, 128
        Hkv = k_cache.shape[1]
        rep = Hq // Hkv
        q = (lambda x, *d: x.permute(*d))((x @ wq).reshape(B, Sq, Hq, Dh), 0, 2, 1, 3)
        k = (lambda x, n, axis: torch.repeat_interleave(x, n, dim=axis))(k_cache, rep, axis=1)
        v = (lambda x, n, axis: torch.repeat_interleave(x, n, dim=axis))(v_cache, rep, axis=1)
        scores = torch.einsum("bhqd,bhkd->bhqk", q, k) * (Dh ** -0.5)
        p = _softmax(scores, axis=-1)
        o = torch.einsum("bhqk,bhkd->bhqd", p, v)
        return (lambda x, *d: x.permute(*d))(o, 0, 2, 1, 3).reshape(B, Sq, Hq * Dh) @ wo

    a = _A_ref(A_x, A_k_cache, A_v_cache, A_wq, A_wo)
    b = _B_ref(B_x, B_k_cache, B_v_cache, B_wq, B_wo)
    return torch.concatenate([a, b], axis=-1)
```

```python
KN = 'concat_heads__sliding_block_cached__gqa_block_cached__decode'
class Asm:
    def __init__(self):
        self.l = []
    def __call__(self, s=''):
        for x in s.split('\n'):
            self.l.append(x)
    def text(self):
        return '\n'.join(self.l) + '\n'
def header(launches):
    s = ''
    for k, g, b, lds in launches:
        kk = f'kernel={k} ' if k else ''
        s += f'; @launch {kk}grid=({g},1,1) block=({b},1,1) lds={lds}\n'
    s += '.amdgcn_target "amdgcn-amd-amdhsa--gfx950"\n.text\n'
    return s
def kstart(name):
    return f'.globl {name}\n.p2align 8\n.type {name},@function\n{name}:\n'
def kdesc(name, vgpr, sgpr, accum):
    return f''' .amdhsa_kernel {name}
  .amdhsa_next_free_vgpr {vgpr}
  .amdhsa_next_free_sgpr {sgpr}
  .amdhsa_accum_offset {accum}
  .amdhsa_group_segment_fixed_size 0
  .amdhsa_kernarg_size 104
  .amdhsa_user_sgpr_count 2
  .amdhsa_user_sgpr_kernarg_segment_ptr 1
  .amdhsa_system_sgpr_workgroup_id_x 1
.end_amdhsa_kernel
'''.replace(' .amdhsa_kernel', '.amdhsa_kernel')
```

```python
import sys
from asmlib import *

QP   = 0x1000
PART = 0x40000
ML   = 0x480000
OP   = 0x500000
WSSZ = 0x700000
STAMP = 0x10000000
LQP = 0
LQ  = 2048
LQB = 8 * 272
LO  = 6656
LOW = 8 * 528
LOB = 4 * LOW
LML = LO + 2 * LOB
LOF = LML + 512
LW  = LOF + 64
LDSSZ = LW + 256
SPIN = 400000

def gen(fn, stamps=False, pol='nt', opt=None):
    opt = opt or {}
    A = Asm()
    name = KN + '_kernel'
    A(open('cdna_kernels/' + KN + '.s.ref').read().split('; Override launch')[0].rstrip('\n'))
    A(header([(None, 256, 320, LDSSZ)]))
    A(kstart(name))
    nst = [0]
    def stamp(k):
        if stamps:
            A(f's_memrealtime s[{84 + 2 * k}:{85 + 2 * k}]')
    def srd(d, lo, hi, off, size):
        if off is None:
            A(f's_mov_b32 s{d}, s{lo}\ns_mov_b32 s{d+1}, s{hi}')
        else:
            A(f's_add_u32 s{d}, s{lo}, {off}\ns_addc_u32 s{d+1}, s{hi}, 0')
        A(f's_mov_b32 s{d+2}, {size}\ns_mov_b32 s{d+3}, 0x20000')
    A(f'''
    s_cmp_ge_u32 s2, 256
    s_cbranch_scc1 L_end
    s_load_dwordx16 s[4:19], s[0:1], 0
    s_load_dwordx8 s[20:27], s[0:1], 64
    s_load_dwordx2 s[28:29], s[0:1], 96     ; ws
''')
    stamp(0)
    A(f'''
    v_lshrrev_b32 v1, 6, v0
    v_and_b32 v0, 63, v0
    v_readfirstlane_b32 s3, v1
    s_lshr_b32 s30, s2, 6
    s_and_b32 s31, s2, 63                   ; chunk
    s_lshr_b32 s32, s2, 7
    s_and_b32 s33, s2, 127
    v_lshlrev_b32 v2, 4, v0                 ; lane*16
    v_lshrrev_b32 v8, 4, v0                 ; g
    v_and_b32 v9, 15, v0                    ; n
    s_mov_b32 s73, 0x05040100
    s_mov_b32 s74, 0x07060302
    s_mov_b32 s75, 0x3db504f3               ; 128^-0.5
    s_mov_b32 s76, 0x3fb8aa3b               ; log2(e)
    s_mov_b32 s77, 0xffff0000
    s_cmp_eq_u32 s3, 4
    s_cbranch_scc1 L_sync
''')
    A(f'''
    ; vWQ (v3) = (l>>3)*8*8192 + (l&7)*16
    v_lshrrev_b32 v3, 3, v0
    v_lshlrev_b32 v3, 16, v3
    v_and_b32 v15, 7, v0
    v_lshl_add_u32 v3, v15, 4, v3
    ; vX (v4) = (2g + (n&1))*16
    v_and_b32 v15, 1, v0
    v_lshl_add_u32 v4, v8, 1, v15
    v_lshlrev_b32 v4, 4, v4
    ; vK (v1) = (4*(n&3) + (n>>2))*256 + g*16
    v_and_b32 v15, 3, v9
    v_lshrrev_b32 v1, 2, v9
    v_lshl_add_u32 v1, v15, 2, v1
    v_lshlrev_b32 v1, 8, v1
    v_lshl_add_u32 v1, v8, 4, v1
    s_and_b32 s34, s33, 63
    s_lshr_b32 s35, s33, 6
    s_lshl_b32 s78, s34, 7                  ; cg*128 B
    s_lshl_b32 s79, s35, 22
    s_add_u32 s78, s78, s79
    s_lshl_b32 s79, s3, 20
    s_add_u32 s78, s78, s79
    s_lshl_b32 s80, s35, 10                 ; x: half*1024
    s_lshl_b32 s79, s3, 8
    s_add_u32 s80, s80, s79                 ; + wave*256
    s_waitcnt lgkmcnt(0)
    s_cmp_eq_u32 s32, 0
    s_cselect_b32 s52, s10, s20
    s_cselect_b32 s53, s11, s21
    s_cselect_b32 s60, s4, s14
    s_cselect_b32 s61, s5, s15
    s_cselect_b32 s56, s12, s22
    s_cselect_b32 s57, s13, s23
    s_add_u32 s52, s52, s78
    s_addc_u32 s53, s53, 0
    s_sub_u32 s54, 0x800000, s78
    s_mov_b32 s55, 0x20000
    s_mov_b32 s62, 2048
    s_mov_b32 s63, 0x20000
    buffer_load_dwordx4 v[64:67], v4, s[60:63], s80 offen
    buffer_load_dwordx4 v[68:71], v4, s[60:63], s80 offen offset:128
''')
    WQ = 80
    for st in range(2):
        for j in range(8):
            off = (st * 64 + j) * 8192
            r = WQ + (st * 8 + j) * 4
            if off == 0:
                A(f'buffer_load_dwordx4 v[{r}:{r+3}], v3, s[52:55], 0 offen {pol}')
            else:
                A(f's_mov_b32 s70, {off}\nbuffer_load_dwordx4 v[{r}:{r+3}], v3, s[52:55], s70 offen {pol}')
    A(f'''
    s_load_dword s72, s[28:29], 0           ; epoch
    s_lshl_b32 s78, s30, 24
    s_lshl_b32 s79, s31, 18
    s_add_u32 s79, s79, s78                 ; B offset
    s_lshl_b32 s80, s31, 14
    s_add_u32 s80, s80, s78
    s_add_u32 s80, s80, {(65536 - 4096) * 256}
    s_lshl_b32 s81, s3, 12
    s_add_u32 s80, s80, s81
''')
    srd(36, 16, 17, 's79', 0x40000); srd(40, 18, 19, 's79', 0x40000)
    srd(44, 6, 7, 's80', 0x1000); srd(48, 8, 9, 's80', 0x1000)
    srd(64, 28, 29, None, WSSZ)
    A(f'''
    s_lshl_b32 s78, s33, 16
    s_add_u32 s56, s56, s78
    s_addc_u32 s57, s57, 0
    s_mov_b32 s58, 0x10000
    s_mov_b32 s59, 0x20000
    s_lshl_b32 s82, s3, 13
    s_mov_b32 s83, s82                      ; (V)
    v_and_b32 v15, 7, v9
    v_mul_u32_u24 v10, 272, v15
    v_lshl_add_u32 v10, v8, 4, v10
    v_mul_u32_u24 v11, 528, v15
    v_lshl_add_u32 v11, v8, 7, v11
    s_mul_i32 s78, s3, {LOW}
    v_add_u32 v11, s78, v11
    v_lshrrev_b32 v15, 5, v0
    s_lshl_b32 s78, s3, 1
    v_add_u32 v15, s78, v15                 ; h
    v_mul_u32_u24 v12, 528, v15
    v_and_b32 v7, 31, v0
    v_lshl_add_u32 v12, v7, 3, v12
    v_lshlrev_b32 v13, 10, v15
    v_lshl_add_u32 v13, v7, 4, v13
    v_lshlrev_b32 v14, 12, v8
    v_lshl_add_u32 v14, v9, 4, v14
    s_lshl_b32 s78, s3, 9
    v_add_u32 v14, s78, v14
''')
    def kload(dst, srdn, soff, n16):
        for t in range(n16):
            if t == 1: A(f's_add_u32 s70, {soff}, 4096')
            so = soff if t == 0 else 's70'
            for m in range(4):
                r = dst + t * 16 + m * 4
                A(f'buffer_load_dwordx4 a[{r}:{r+3}], v1, {srdn}, {so} offen offset:{m*64} {pol}')
    def vload(dst, srdn, soff, n):
        for j in range(n):
            if j == 4: A(f's_add_u32 s70, {soff}, 4096')
            so = soff if j < 4 else 's70'
            r = dst + j * 4
            A(f'buffer_load_dwordx4 v[{r}:{r+3}], v2, {srdn}, {so} offen offset:{(j%4)*1024} {pol}')
    def perm(dst, src, e, njj):
        dd, hi = e >> 1, e & 1
        for jj in range(njj):
            A(f'v_perm_b32 v{dst+jj}, v{src+(2*jj+1)*4+dd}, v{src+2*jj*4+dd}, s{74 if hi else 73}')
    def qset(st):
        T = 48
        src = WQ + st * 32
        xr = 64 + st * 4
        for e in range(9):
            if e < 8: perm(T + (e % 4) * 4, src, e, 4)
            if e >= 1:
                if e == 8: A('s_nop 1')
                t = T + ((e - 1) % 4) * 4
                d = 32 + (e - 1) * 4
                c = '0' if st == 0 else f'a[{d}:{d+3}]'
                A(f'v_mfma_f32_16x16x32_bf16 a[{d}:{d+3}], v[{t}:{t+3}], v[{xr}:{xr+3}], {c}')
    A('s_waitcnt vmcnt(8)')
    kload(64, 's[44:47]', '0', 1); vload(144, 's[48:51]', '0', 4)
    qset(0)
    A('s_waitcnt vmcnt(8)')
    kload(0, 's[36:39]', 's82', 2)
    qset(1)
    A(f'''
    v_lshlrev_b32 v15, 7, v8
    s_lshl_b32 s78, s3, 9
    v_add_u32 v15, s78, v15
    s_mov_b32 exec_lo, 0x00010001
    s_mov_b32 exec_hi, 0x00020002
    s_nop 4
''')
    for e in range(8):
        A(f'ds_write_b128 v15, a[{32+e*4}:{35+e*4}] offset:{LQP + e*16}')
    A('s_mov_b64 exec, -1\ns_waitcnt lgkmcnt(0)\ns_add_u32 s72, s72, 1\ns_barrier        ; B1')
    stamp(1)
    A('s_waitcnt vmcnt(8)')
    vload(16, 's[40:43]', 's83', 8)
    A('s_add_u32 s82, s82, 0x8000\ns_add_u32 s83, s83, 0x8000')
    A('s_waitcnt vmcnt(8)')
    kload(32, 's[36:39]', 's82', 2)
    A('s_waitcnt vmcnt(8)')
    vload(48, 's[40:43]', 's83', 8)
    A('s_add_u32 s82, s82, 0x8000\ns_add_u32 s83, s83, 0x8000')
    A('s_barrier        ; B2')
    stamp(2)
    ACC, TT, S, U, P = 80, 112, 128, 136, 140
    Q = 80
    def qfrag(br):
        for m in range(4):
            A(f'ds_read_b128 a[{Q+m*4}:{Q+m*4+3}], v10 offset:{LQ + br*LQB + m*64}')
    def qk(kb, nt):
        for m in range(4):
            for t in range(nt):
                c = '0' if m == 0 else f'v[{S+t*4}:{S+t*4+3}]'
                A(f'v_mfma_f32_16x16x32_bf16 v[{S+t*4}:{S+t*4+3}], a[{kb+t*16+m*4}:{kb+t*16+m*4+3}], a[{Q+m*4}:{Q+m*4+3}], {c}')
    def roundscale(nv):
        for k in range(nv // 2): A(f'v_cvt_pk_bf16_f32 v{U+k}, v{S+2*k}, v{S+2*k+1}')
        for k in range(nv // 2):
            A(f'v_lshlrev_b32 v{S+2*k}, 16, v{U+k}\nv_and_b32 v{S+2*k+1}, s77, v{U+k}')
        for k in range(nv): A(f'v_mul_f32 v{S+k}, s75, v{S+k}')
        for k in range(nv // 2): A(f'v_cvt_pk_bf16_f32 v{U+k}, v{S+2*k}, v{S+2*k+1}')
        for k in range(nv // 2):
            A(f'v_lshlrev_b32 v{S+2*k}, 16, v{U+k}\nv_and_b32 v{S+2*k+1}, s77, v{U+k}')
    def xg(reg, tmp, op):
        A(f'v_mov_b32 v{tmp}, v{reg}\ns_nop 1\nv_permlane16_swap_b32 v{reg}, v{tmp}\ns_nop 1\n{op} v{reg}, v{reg}, v{tmp}')
        A(f'v_mov_b32 v{tmp}, v{reg}\ns_nop 1\nv_permlane32_swap_b32 v{reg}, v{tmp}\ns_nop 1\n{op} v{reg}, v{reg}, v{tmp}')
    def exps(nv, first):
        A('v_mul_f32 v7, s76, v5')
        for k in range(nv): A(f'v_fma_f32 v{S+k}, v{S+k}, s76, -v7')
        for k in range(nv): A(f'v_exp_f32 v{S+k}, v{S+k}')
        A('s_nop 0')
        for k in range(nv // 2): A(f'v_cvt_pk_bf16_f32 v{P+k}, v{S+2*k}, v{S+2*k+1}')
        if first:
            A(f'v_add_f32 v6, v{S}, v{S+1}')
            for k in range(2, nv): A(f'v_add_f32 v6, v6, v{S+k}')
        else:
            for k in range(0, nv, 2): A(f'v_add_f32 v{S+k}, v{S+k}, v{S+k+1}')
            for k in range(0, nv, 4): A(f'v_add_f32 v{S+k}, v{S+k}, v{S+k+2}')
            A(f'v_add_f32 v{S}, v{S}, v{S+4}\nv_add_f32 v6, v6, v{S}')
    def pv(vb, half):
        njj = 2 if half else 4
        for e in range(9):
            if e < 8: perm(TT + (e % 4) * 4, vb, e, njj)
            if e >= 1:
                if e == 8: A('s_nop 1')
                elif half: A('s_nop 0')
                t = TT + ((e - 1) % 4) * 4
                d = ACC + (e - 1) * 4
                if half:
                    A(f'v_mfma_f32_16x16x16_bf16 v[{d}:{d+3}], v[{t}:{t+1}], v[{P}:{P+1}], 0')
                else:
                    A(f'v_mfma_f32_16x16x32_bf16 v[{d}:{d+3}], v[{t}:{t+3}], v[{P}:{P+3}], v[{d}:{d+3}]')
    def publish(br, bar):
        xg(6, 15, 'v_add_f32')
        A(f'''
    s_mov_b32 exec_lo, 0x00ff00ff
    s_mov_b32 exec_hi, 0x00ff00ff''')
        for e in range(8):
            A(f'ds_write_b128 v11, v[{ACC+e*4}:{ACC+e*4+3}] offset:{LO + br*LOB + e*16}')
        A(f'''
    s_mov_b64 exec, 0xff
    v_lshlrev_b32 v15, 5, v0
    s_lshl_b32 s78, s3, 3
    v_add_u32 v15, s78, v15
    v_mov_b32 v8, v5
    v_mov_b32 v9, v6
    ds_write_b64 v15, v[8:9] offset:{LML + br*256}
    s_mov_b64 exec, -1
    v_lshrrev_b32 v15, 10, v13              ; h
    v_lshlrev_b32 v15, 5, v15
    s_waitcnt lgkmcnt(0)
    s_barrier        ; {bar}
    ds_read_b128 v[{TT}:{TT+3}], v15 offset:{LML + br*256}
    ds_read_b128 v[{TT+4}:{TT+7}], v15 offset:{LML + br*256 + 16}''')
        for w in range(4):
            o = (LO + br * LOB + w * LOW)
            A(f'v_add_u32 v7, {o}, v12\nds_read2_b64 v[{ACC+w*4}:{ACC+w*4+3}], v7 offset0:0 offset1:32')
        m = [TT, TT + 2, TT + 4, TT + 6]; l = [TT + 1, TT + 3, TT + 5, TT + 7]
        R = S
        A(f'''
    s_lshl_b32 s78, s2, 13
    s_add_u32 s78, s78, {PART + br * 0x200000}
    v_mov_b32 v{R+1}, s72
    v_mov_b32 v{R+3}, s72
    v_mov_b32 v{R+5}, s72
    v_mov_b32 v{R+7}, s72
    v_mov_b32 v{U+1}, s72
    v_mov_b32 v{U+3}, s72
    s_waitcnt lgkmcnt(4)
    v_max3_f32 v{U}, v{m[0]}, v{m[1]}, v{m[2]}
    v_max_f32 v{U}, v{U}, v{m[3]}
    v_mul_f32 v7, s76, v{U}''')
        for w in range(4): A(f'v_fma_f32 v{m[w]}, v{m[w]}, s76, -v7')
        for w in range(4): A(f'v_exp_f32 v{m[w]}, v{m[w]}')
        A('s_waitcnt lgkmcnt(0)')
        A(f'v_mul_f32 v{U+2}, v{m[0]}, v{l[0]}')
        for k in range(4): A(f'v_mul_f32 v{R+2*k}, v{m[0]}, v{ACC+k}')
        for w in range(1, 4):
            A(f'v_fmac_f32 v{U+2}, v{m[w]}, v{l[w]}')
            for k in range(4): A(f'v_fmac_f32 v{R+2*k}, v{m[w]}, v{ACC+w*4+k}')
        A(f'''
    buffer_store_dwordx4 v[{R}:{R+3}], v13, s[64:67], s78 offen sc1
    buffer_store_dwordx4 v[{R+4}:{R+7}], v13, s[64:67], s78 offen offset:512 sc1
    s_lshl_b32 s78, s30, 13
    s_lshl_b32 s79, s31, 4
    s_add_u32 s78, s78, s79
    s_add_u32 s78, s78, {ML + br * 0x8000}
    s_mov_b32 exec_lo, 1
    s_mov_b32 exec_hi, 1
    buffer_store_dwordx4 v[{U}:{U+3}], v13, s[64:67], s78 offen sc1
    s_mov_b64 exec, -1''')
    qfrag(0)
    A('s_waitcnt vmcnt(32) lgkmcnt(0)')
    qk(64, 1)
    qfrag(1)
    A('s_nop 4')
    roundscale(4)
    A(f'v_max3_f32 v5, v{S}, v{S+1}, v{S+2}\nv_max_f32 v5, v5, v{S+3}')
    xg(5, 15, 'v_max_f32')
    exps(4, True)
    pv(144, True)
    A('s_nop 4')
    publish(0, 'B3a')
    for k in range(32): A(f'v_mov_b32 v{ACC+k}, 0')
    A('v_mov_b32 v5, 0xff7fffff\nv_mov_b32 v6, 0\ns_mov_b32 s81, 0')
    stamp(3)
    A('L_loop:')
    for b in range(2):
        kb, vb = b * 32, 16 + b * 32
        A('s_waitcnt vmcnt(24)')
        qk(kb, 2)
        kload(kb, 's[36:39]', 's82', 2)
        A('s_add_u32 s82, s82, 0x8000')
        roundscale(8)
        A(f'v_max3_f32 v8, v{S}, v{S+1}, v5\nv_max3_f32 v9, v{S+2}, v{S+3}, v{S+4}\nv_max3_f32 v8, v8, v{S+5}, v{S+6}\nv_max3_f32 v8, v8, v9, v{S+7}')
        xg(8, 15, 'v_max_f32')
        A(f'''
    v_cmp_gt_f32 vcc, v8, v5
    s_cbranch_vccz L_nors{b}
    v_sub_f32 v9, v5, v8
    v_mul_f32 v9, s76, v9
    v_exp_f32 v9, v9
    v_mov_b32 v5, v8
    v_mul_f32 v6, v6, v9''')
        for k in range(32): A(f'v_mul_f32 v{ACC+k}, v{ACC+k}, v9')
        A(f'L_nors{b}:')
        exps(8, False)
        A('s_waitcnt vmcnt(24)')
        pv(vb, False)
        if b == 0:
            A('s_cmp_eq_u32 s81, 3\ns_cbranch_scc1 L_wo0')
            vload(vb, 's[40:43]', 's83', 8)
            A('s_add_u32 s83, s83, 0x8000\nL_wo0_ret:')
        else:
            A('s_cmp_eq_u32 s81, 3\ns_cbranch_scc1 L_loop_end')
            vload(vb, 's[40:43]', 's83', 8)
            A('s_add_u32 s83, s83, 0x8000\ns_add_u32 s81, s81, 1\ns_branch L_loop')
    def woload(dst, cg):
        for j in range(8):
            off = (8 * (j & 3) + (j >> 2)) * 2048 + cg * 256
            r = dst + j * 4
            lo = off & 4095
            A(f's_mov_b32 s70, {off - lo}\nbuffer_load_dwordx4 v[{r}:{r+3}], v14, s[56:59], s70 offen offset:{lo} {pol}')
    A('L_wo0:')
    woload(16, 0)
    A('s_branch L_wo0_ret')
    A('L_loop_end:')
    stamp(4)
    A('s_nop 4')
    publish(1, 'B3')
    stamp(5)
    woload(48, 1)
    A('s_waitcnt vmcnt(11)')
    for e in range(8): perm(80 + e * 4, 16, e, 4)
    A('s_waitcnt vmcnt(0)')
    for e in range(8): perm(112 + e * 4, 48, e, 4)
    A(f'''
    v_lshrrev_b32 v8, 4, v0
    v_lshlrev_b32 v15, 4, v8                ; g*16
    v_and_b32 v9, 15, v0
    v_lshlrev_b32 v13, 6, v9
    v_add_u32 v13, v13, v15                 ; 64c + 16g
    s_lshl_b32 s78, s2, 13
    s_lshl_b32 s79, s3, 11
    s_add_u32 s78, s78, s79
    s_add_u32 s78, s78, {OP}
    v_mov_b32 v17, s72
    v_mov_b32 v19, s72
    v_mov_b32 v21, s72
    v_mov_b32 v23, s72
    s_barrier        ; B4
    ds_read_b128 v[24:27], v15 offset:{LOF}
    s_waitcnt lgkmcnt(0)''')
    stamp(6)
    for x in range(16):
        A(f'v_mfma_f32_16x16x32_bf16 a[{x*4}:{x*4+3}], v[24:27], v[{80+x*4}:{83+x*4}], 0')
    A('s_mov_b64 exec, 0xffff\ns_nop 6')
    for gg in range(4):
        for k, x in enumerate([2 * gg, 2 * gg + 1, 8 + 2 * gg, 9 + 2 * gg]):
            A(f'v_accvgpr_read_b32 v{16+2*k}, a{x*4}')
        if gg < 3: A('s_lshl_b64 exec, exec, 16')
    A(f'''
    s_mov_b64 exec, -1
    buffer_store_dwordx4 v[16:19], v13, s[64:67], s78 offen sc1
    buffer_store_dwordx4 v[20:23], v13, s[64:67], s78 offen offset:1024 sc1''')
    stamp(7)
    A('s_branch L_fin')
    A('L_sync:')
    A('s_waitcnt lgkmcnt(0)\ns_load_dword s72, s[28:29], 0')
    srd(64, 28, 29, None, WSSZ)
    srd(68, 24, 25, None, 4096)
    A(f'''
    v_lshrrev_b32 v3, 5, v0
    v_lshlrev_b32 v3, 5, v3
    v_and_b32 v15, 3, v0
    v_lshl_add_u32 v3, v15, 3, v3
    v_bfe_u32 v15, v0, 2, 3
    v_add_u32 v3, v3, v15
    v_lshlrev_b32 v3, 3, v3
    v_lshlrev_b32 v4, 2, v0                 ; lane*4
    v_lshlrev_b32 v5, 15, v8
    v_lshl_add_u32 v5, v9, 9, v5
    v_add_u32 v5, 504, v5
    s_and_b32 s34, s33, 63
    s_lshr_b32 s35, s33, 6
    s_lshl_b32 s78, s32, 16
    s_lshl_b32 s79, s35, 15
    s_add_u32 s78, s78, s79
    s_lshl_b32 s79, s34, 9
    s_add_u32 s78, s78, s79
    s_add_u32 s78, s78, {QP}
    s_lshl_b32 s80, s30, 13
    s_add_u32 s80, s80, {QP}
    s_waitcnt lgkmcnt(0)
    s_add_u32 s72, s72, 1
    s_barrier        ; B1''')
    stamp(1)
    for k in range(8): A(f'ds_read_b32 v{16+k}, v4 offset:{LQP + k*256}')
    A(f'''
    v_mov_b32 v25, s72
    s_waitcnt lgkmcnt(0)
    v_add_f32 v16, v16, v17
    v_add_f32 v18, v18, v19
    v_add_f32 v20, v20, v21
    v_add_f32 v22, v22, v23
    v_add_f32 v16, v16, v18
    v_add_f32 v20, v20, v22
    v_add_f32 v24, v16, v20
    buffer_store_dwordx2 v[24:25], v3, s[64:67], s78 offen sc1
    s_mov_b32 s81, 0
L_qpoll:
    buffer_load_dwordx2 v[16:17], v5, s[64:67], s80 offen sc1
    s_add_u32 s81, s81, 1
    s_cmp_gt_u32 s81, {SPIN}
    s_cbranch_scc1 L_qgo
    s_waitcnt vmcnt(0)
    v_cmp_ne_u32 vcc, s72, v17
    s_cbranch_vccnz L_qpoll
L_qgo:''')
    stamp(2)
    A('L_qgather:')
    for br in range(2):
        for half in range(2):
            for i in range(8):
                off = br * 0x10000 + half * 0x8000 + i * 1024
                r = 16 + (br * 16 + half * 8 + i) * 4
                if i % 4 == 0: A(f's_add_u32 s70, s80, {off}')
                A(f'buffer_load_dwordx4 v[{r}:{r+3}], v2, s[64:67], s70 offen offset:{(i%4)*1024} sc1')
    A(f's_add_u32 s81, s81, 1\ns_waitcnt vmcnt(0)')
    for k in range(32):
        A(f'v_cmpx_eq_u32 vcc, s72, v{17+4*k}\nv_cmpx_eq_u32 vcc, s72, v{19+4*k}')
    A(f'''
    s_cmp_eq_u64 exec, -1
    s_mov_b64 exec, -1
    s_cbranch_scc1 L_qok
    s_cmp_gt_u32 s81, {SPIN}
    s_cbranch_scc0 L_qgather
L_qok:''')
    for br in range(2):
        for i in range(8):
            r = 16 + (br * 16 + i) * 4
            A(f'v_add_f32 v{r}, v{r}, v{r+32}\nv_add_f32 v{r+2}, v{r+2}, v{r+34}\nv_cvt_pk_bf16_f32 v{r}, v{r}, v{r+2}')
            A(f'ds_write_b32 v4, v{r} offset:{LQ + br*LQB + i*272}')
    A(f'''
    s_lshr_b32 s34, s33, 2
    s_and_b32 s35, s33, 3
    s_lshl_b32 s78, s32, 21
    s_lshr_b32 s79, s34, 3
    s_lshl_b32 s79, s79, 19
    s_add_u32 s78, s78, s79
    s_and_b32 s79, s34, 7
    s_lshl_b32 s79, s79, 10
    s_add_u32 s78, s78, s79
    s_lshl_b32 s79, s35, 8
    s_add_u32 s78, s78, s79
    s_add_u32 s78, s78, {PART}
    s_lshl_b32 s79, s32, 15
    s_lshl_b32 s80, s34, 10
    s_add_u32 s79, s79, s80
    s_add_u32 s79, s79, {ML}
    v_lshlrev_b32 v5, 13, v8
    v_lshl_add_u32 v5, v9, 4, v5            ; g*8192 + c*16
    v_and_b32 v6, 3, v0
    v_lshlrev_b32 v6, 6, v6
    v_lshrrev_b32 v15, 2, v0
    v_lshl_add_u32 v6, v15, 2, v6
    v_lshlrev_b32 v7, 6, v8
    s_waitcnt lgkmcnt(0)
    s_barrier        ; B2''')
    stamp(3)
    A(f'''
    s_barrier        ; B3a
    s_cmp_eq_u32 s32, 0
    s_cbranch_scc1 L_pg
    s_barrier        ; B3 (B role)
L_pg:''')
    stamp(4)
    A('s_mov_b32 s81, 0\nL_pgather:')
    A('buffer_load_dwordx4 v[12:15], v2, s[64:67], s79 offen sc1')
    for i in range(16):
        r = 16 + i * 4
        if i == 0: A(f'buffer_load_dwordx4 v[{r}:{r+3}], v5, s[64:67], s78 offen sc1')
        else: A(f's_add_u32 s70, s78, {i * 4 * 8192}\nbuffer_load_dwordx4 v[{r}:{r+3}], v5, s[64:67], s70 offen sc1')
    A(f's_add_u32 s81, s81, 1\ns_waitcnt vmcnt(0)')
    for k in range(17):
        A(f'v_cmpx_eq_u32 vcc, s72, v{13+4*k}\nv_cmpx_eq_u32 vcc, s72, v{15+4*k}')
    A(f'''
    s_cmp_eq_u64 exec, -1
    s_mov_b64 exec, -1
    s_cbranch_scc1 L_pok
    s_cmp_gt_u32 s81, {SPIN}
    s_cbranch_scc0 L_pgather
L_pok:''')
    stamp(5)
    def allred(reg, tmp, op):
        for n in (1, 2, 4, 8):
            A(f's_nop 1\n{op}_dpp v{reg}, v{reg}, v{reg} row_ror:{n} row_mask:0xf bank_mask:0xf')
        xg(reg, tmp, op)
    A('s_nop 2\nv_mov_b32 v10, v12')
    allred(10, 11, 'v_max_f32')
    A(f'''
    v_sub_f32 v12, v12, v10
    v_mul_f32 v12, s76, v12
    v_exp_f32 v12, v12
    s_nop 0
    ds_write_b32 v6, v12 offset:{LW}
    v_mul_f32 v14, v14, v12
    s_waitcnt lgkmcnt(0)''')
    for k in range(4): A(f'ds_read_b128 v[{80+4*k}:{83+4*k}], v7 offset:{LW + 16*k}')
    allred(14, 11, 'v_add_f32')
    A('v_rcp_f32 v14, v14\ns_waitcnt lgkmcnt(0)')
    A('v_mul_f32 v10, v80, v16\nv_mul_f32 v11, v80, v18\nv_mul_f32 v12, v81, v20\nv_mul_f32 v13, v81, v22')
    for i in range(2, 16):
        a = 10 + 2 * (i & 1)
        A(f'v_fmac_f32 v{a}, v{80+i}, v{16+4*i}\nv_fmac_f32 v{a+1}, v{80+i}, v{18+4*i}')
    A('v_add_f32 v10, v10, v12\nv_add_f32 v11, v11, v13')
    xg(10, 12, 'v_add_f32'); xg(11, 12, 'v_add_f32')
    A(f'''
    v_mul_f32 v10, v10, v14
    v_mul_f32 v11, v11, v14
    v_cvt_pk_bf16_f32 v10, v10, v11
    s_mov_b64 exec, 0xffff
    ds_write_b32 v4, v10 offset:{LOF}
    s_mov_b64 exec, -1
    s_lshl_b32 s78, s32, 20                 ; br*128*8192
    s_lshl_b32 s79, s33, 6
    s_add_u32 s78, s78, s79
    s_add_u32 s78, s78, {OP}
    v_lshrrev_b32 v5, 2, v0
    v_lshlrev_b32 v5, 13, v5
    v_and_b32 v6, 3, v0
    v_lshl_add_u32 v5, v6, 4, v5            ; (l>>2)*8192 + (l&3)*16
    s_cmp_eq_u32 s32, 0
    s_cbranch_scc0 L_nob3
    s_barrier        ; B3 (A role)
L_nob3:
    s_waitcnt lgkmcnt(0)
    s_barrier        ; B4''')
    stamp(6)
    A('s_mov_b32 s81, 0\nL_fgather:')
    for i in range(8):
        r = 16 + i * 4
        if i == 0: A(f'buffer_load_dwordx4 v[{r}:{r+3}], v5, s[64:67], s78 offen sc1')
        else: A(f's_add_u32 s70, s78, {i * 16 * 8192}\nbuffer_load_dwordx4 v[{r}:{r+3}], v5, s[64:67], s70 offen sc1')
    A(f's_add_u32 s81, s81, 1\ns_waitcnt vmcnt(0)')
    for k in range(8):
        A(f'v_cmpx_eq_u32 vcc, s72, v{17+4*k}\nv_cmpx_eq_u32 vcc, s72, v{19+4*k}')
    A(f'''
    s_cmp_eq_u64 exec, -1
    s_mov_b64 exec, -1
    s_cbranch_scc1 L_fok
    s_cmp_gt_u32 s81, {SPIN}
    s_cbranch_scc0 L_fgather
L_fok:
    s_nop 2''')
    for st in (16, 8, 4):
        for r in range(16, 16 + st, 4):
            A(f'v_add_f32 v{r}, v{r}, v{r+st}\nv_add_f32 v{r+2}, v{r+2}, v{r+st+2}')
    for n in (4, 8):
        A(f's_nop 1\nv_add_f32_dpp v16, v16, v16 row_ror:{n} row_mask:0xf bank_mask:0xf\nv_add_f32_dpp v18, v18, v18 row_ror:{n} row_mask:0xf bank_mask:0xf')
    xg(16, 12, 'v_add_f32'); xg(18, 12, 'v_add_f32')
    A(f'''
    v_cvt_pk_bf16_f32 v16, v16, v18
    s_lshl_b32 s78, s2, 4
    s_mov_b64 exec, 0xf
    buffer_store_dword v16, v4, s[68:71], s78 offen
    s_cmp_eq_u32 s2, 0
    s_cbranch_scc0 L_noep
    s_mov_b64 exec, 1
    v_mov_b32 v17, s72
    buffer_store_dword v17, v4, s[64:67], 0 offen sc1
L_noep:
    s_mov_b64 exec, -1''')
    stamp(7)
    A('L_fin:')
    if stamps:
        A('s_waitcnt vmcnt(0) lgkmcnt(0)')
        for k in range(16): A(f'v_mov_b32 v{16+k}, s{84+k}')
        A(f'''
    s_mul_i32 s78, s2, 5
    s_add_u32 s78, s78, s3
    s_lshl_b32 s78, s78, 6
    s_add_u32 s78, s78, {STAMP}
    v_mov_b32 v1, s78
    s_mov_b64 exec, 1''')
        for k in range(4): A(f'global_store_dwordx4 v1, v[{16+4*k}:{19+4*k}], s[28:29] offset:{16*k}')
    A('''
L_end:
    s_endpgm
.section .rodata,"a"
.p2align 6
''')
    A(kdesc(name, 256, 102, 160).replace('.end_amdhsa', '  .amdhsa_float_denorm_mode_32 3\n.end_amdhsa'))
    open(fn, 'w').write(A.text())

if __name__ == '__main__':
    gen('k1.s'); gen('k1_st.s', stamps=True)
```

```python
import sys
from asmlib import *

QP   = 0x1000
PART = 0x40000
ML   = 0x480000
OP   = 0x500000
WSSZ = 0x700000
STAMP = 0x10000000
LQP = 0
LQ  = 2048
LQB = 8 * 272
LO  = 6656
LOW = 8 * 528
LOB = 4 * LOW
LML = LO + 2 * LOB
LOF = LML + 512
LW  = LOF + 64
LDSSZ = LW + 256
SPIN = 400000

def gen(fn, stamps=False, pol='nt', opt=None):
    opt = opt or {}
    WSB = opt.get('wsb', 0)
    sp = opt.get('sp', 'sc1')
    NOST = opt.get('nost')
    lp = opt.get('lp', 'sc1')
    A = Asm()
    name = KN + '_kernel'
    A(open('cdna_kernels/' + KN + '.s.ref').read().split('; Override launch')[0].rstrip('\n'))
    A(header([(None, 256, 320, LDSSZ)]))
    A(kstart(name))
    DIAG1 = 's_waitcnt vmcnt(0)\ns_memrealtime s[96:97]\n' if opt.get('diag') else ''
    insync = [0]
    PRE = ''
    if opt.get('pre'):
        n = opt['pre']
        PRE = f'''
    s_lshr_b32 s36, s2, 6
    s_lshl_b32 s36, s36, 24
    s_and_b32 s37, s2, 63
    s_lshl_b32 s37, s37, 2
    s_add_u32 s37, s37, s3
    s_mul_i32 s37, s37, {60*1024}
    s_add_u32 s36, s36, s37
    s_add_u32 s40, s6, s36
    s_addc_u32 s41, s7, 0
    s_mov_b32 s42, 0x10000
    s_mov_b32 s43, 0x20000
    s_add_u32 s44, s8, s36
    s_addc_u32 s45, s9, 0
    s_mov_b32 s46, 0x10000
    s_mov_b32 s47, 0x20000
    s_mov_b32 s70, 0
L_pre:
    s_waitcnt vmcnt(14)
    buffer_load_dwordx4 v[16:19], v2, s[40:43], s70 offen {pol}
    buffer_load_dwordx4 v[20:23], v2, s[44:47], s70 offen {pol}
    s_add_u32 s70, s70, 1024
    s_cmp_lt_u32 s70, {n*1024}
    s_cbranch_scc1 L_pre
    s_waitcnt vmcnt(0)
'''
    QST = {'st': f'buffer_store_dwordx2 v[24:25], v3, s[64:67], s78 offen {sp}',
           'sw': 'buffer_atomic_swap_x2 v[24:25], v3, s[64:67], s78 offen sc1',
           'swr': 'buffer_atomic_swap_x2 v[24:25], v3, s[64:67], s78 offen sc0 sc1',
           'sw0': 'buffer_atomic_swap_x2 v[24:25], v3, s[64:67], s78 offen',
           'stwb': 'buffer_store_dwordx2 v[24:25], v3, s[64:67], s78 offen\ns_waitcnt vmcnt(0)\nbuffer_wbl2 sc1',
           }[opt.get('qst', 'st')]
    CS = opt.get('cs', 'start.b1.b2.loop.vlast.pub.b4.end').split('.')
    SS = opt.get('ss', 'start.b1.qpre.qgat.pgs.pgok.b4.end').split('.')
    def stamp(nm):
        L = SS if insync[0] else CS
        if stamps and nm in L:
            k = L.index(nm)
            A(f's_memrealtime s[{84 + 2 * k}:{85 + 2 * k}]')
    def cstamp(nm):
        L = SS if insync[0] else CS
        if stamps and nm in L:
            k = L.index(nm)
            A(f's_waitcnt lgkmcnt(0)\ns_mul_i32 s{84+2*k}, s81, 100\ns_add_u32 s{84+2*k}, s{84+2*k}, s84\ns_addc_u32 s{85+2*k}, s85, 0')
    def srd(d, lo, hi, off, size):
        if off is None:
            A(f's_mov_b32 s{d}, s{lo}\ns_mov_b32 s{d+1}, s{hi}')
        else:
            A(f's_add_u32 s{d}, s{lo}, {off}\ns_addc_u32 s{d+1}, s{hi}, 0')
        A(f's_mov_b32 s{d+2}, {size}\ns_mov_b32 s{d+3}, 0x20000')
    A(f'''
    s_cmp_ge_u32 s2, 256
    s_cbranch_scc1 L_end
    s_load_dwordx16 s[4:19], s[0:1], 0
    s_load_dwordx8 s[20:27], s[0:1], 64
    s_load_dwordx2 s[28:29], s[0:1], 96     ; ws
''')
    stamp('start')
    A(f'''
    v_lshrrev_b32 v1, 6, v0
    v_and_b32 v0, 63, v0
    v_readfirstlane_b32 s3, v1
    s_lshr_b32 s30, s2, 6
    s_and_b32 s31, s2, 63                   ; chunk
    s_lshr_b32 s32, s2, 7
    s_and_b32 s33, s2, 127
    v_lshlrev_b32 v2, 4, v0                 ; lane*16
    v_lshrrev_b32 v8, 4, v0                 ; g
    v_and_b32 v9, 15, v0                    ; n
    s_mov_b32 s73, 0x05040100
    s_mov_b32 s74, 0x07060302
    s_mov_b32 s75, 0x3db504f3               ; 128^-0.5
    s_mov_b32 s76, 0x3fb8aa3b               ; log2(e)
    s_mov_b32 s77, 0xffff0000
    s_cmp_eq_u32 s3, 4
    s_cbranch_scc1 L_sync
''')
    A(f'''
    ; vWQ (v3) = (l>>3)*8*8192 + (l&7)*16
    v_lshrrev_b32 v3, 3, v0
    v_lshlrev_b32 v3, 16, v3
    v_and_b32 v15, 7, v0
    v_lshl_add_u32 v3, v15, 4, v3
    ; vX (v4) = (2g + (n&1))*16
    v_and_b32 v15, 1, v0
    v_lshl_add_u32 v4, v8, 1, v15
    v_lshlrev_b32 v4, 4, v4
    ; vK (v1) = (4*(n&3) + (n>>2))*256 + g*16
    v_and_b32 v15, 3, v9
    v_lshrrev_b32 v1, 2, v9
    v_lshl_add_u32 v1, v15, 2, v1
    v_lshlrev_b32 v1, 8, v1
    v_lshl_add_u32 v1, v8, 4, v1
    {'v_mov_b32 v1, v2' if opt.get('klin') else ''}
    s_and_b32 s34, s33, 63
    s_lshr_b32 s35, s33, 6
    s_lshl_b32 s78, s34, 7                  ; cg*128 B
    s_lshl_b32 s79, s35, 22
    s_add_u32 s78, s78, s79
    s_lshl_b32 s79, s3, 20
    s_add_u32 s78, s78, s79
    s_lshl_b32 s80, s35, 10                 ; x: half*1024
    s_lshl_b32 s79, s3, 8
    s_add_u32 s80, s80, s79                 ; + wave*256
    s_waitcnt lgkmcnt(0)
    s_cmp_eq_u32 s32, 0
    s_cselect_b32 s52, s10, s20
    s_cselect_b32 s53, s11, s21
    s_cselect_b32 s60, s4, s14
    s_cselect_b32 s61, s5, s15
    s_cselect_b32 s56, s12, s22
    s_cselect_b32 s57, s13, s23
    s_add_u32 s52, s52, s78
    s_addc_u32 s53, s53, 0
    s_sub_u32 s54, 0x800000, s78
    s_mov_b32 s55, 0x20000
    s_mov_b32 s62, 2048
    s_mov_b32 s63, 0x20000
{PRE}
    buffer_load_dwordx4 v[64:67], v4, s[60:63], s80 offen
    buffer_load_dwordx4 v[68:71], v4, s[60:63], s80 offen offset:128
''')
    WQ = 80
    for st in range(2):
        for j in range(8):
            off = (st * 64 + j) * 8192
            r = WQ + (st * 8 + j) * 4
            if off == 0:
                A(f'buffer_load_dwordx4 v[{r}:{r+3}], v3, s[52:55], 0 offen {pol}')
            else:
                A(f's_mov_b32 s70, {off}\nbuffer_load_dwordx4 v[{r}:{r+3}], v3, s[52:55], s70 offen {pol}')
    A(f'''
    s_load_dword s72, s[28:29], 0           ; epoch
    s_lshl_b32 s78, s30, 24
    s_lshl_b32 s79, s31, 18
    s_add_u32 s79, s79, s78                 ; B offset
    s_lshl_b32 s80, s31, 14
    s_add_u32 s80, s80, s78
    s_add_u32 s80, s80, {(65536 - 4096) * 256}
    s_lshl_b32 s81, s3, 12
    s_add_u32 s80, s80, s81
''')
    srd(36, 16, 17, 's79', 0x40000); srd(40, 18, 19, 's79', 0x40000)
    srd(44, 6, 7, 's80', 0x1000); srd(48, 8, 9, 's80', 0x1000)
    srd(64, 28, 29, WSB if WSB else None, WSSZ)
    A(f'''
    s_lshl_b32 s78, s33, 16
    s_add_u32 s56, s56, s78
    s_addc_u32 s57, s57, 0
    s_mov_b32 s58, 0x10000
    s_mov_b32 s59, 0x20000
    s_lshl_b32 s82, s3, 13
    s_mov_b32 s83, s82                      ; (V)
    v_and_b32 v15, 7, v9
    v_mul_u32_u24 v10, 272, v15
    v_lshl_add_u32 v10, v8, 4, v10
    v_mul_u32_u24 v11, 528, v15
    v_lshl_add_u32 v11, v8, 7, v11
    s_mul_i32 s78, s3, {LOW}
    v_add_u32 v11, s78, v11
    v_lshrrev_b32 v15, 5, v0
    s_lshl_b32 s78, s3, 1
    v_add_u32 v15, s78, v15                 ; h
    v_mul_u32_u24 v12, 528, v15
    v_and_b32 v7, 31, v0
    v_lshl_add_u32 v12, v7, 3, v12
    v_lshlrev_b32 v13, 10, v15
    v_lshl_add_u32 v13, v7, 4, v13
    v_lshlrev_b32 v14, 12, v8
    v_lshl_add_u32 v14, v9, 4, v14
    s_lshl_b32 s78, s3, 9
    v_add_u32 v14, s78, v14
''')
    D = opt.get('D', 6)
    KST = 1024 if opt.get('klin') else 64
    def pace(d=None):
        A(f's_waitcnt vmcnt({(d or D) - 1})')
    def kl(dst, srdn, soff, n16):
        L = []
        for t in range(n16):
            so = soff if t == 0 else 's70'
            for m in range(4):
                r = dst + t * 16 + m * 4
                pre = f's_add_u32 s70, {soff}, 4096\n' if (t == 1 and m == 0) else ''
                L.append((pre, f'buffer_load_dwordx4 a[{r}:{r+3}], v1, {srdn}, {so} offen offset:{m*KST} {pol}'))
        return L
    def vl(dst, srdn, soff, n):
        L = []
        for j in range(n):
            so = soff if j < 4 else 's70'
            r = dst + j * 4
            pre = f's_add_u32 s70, {soff}, 4096\n' if j == 4 else ''
            L.append((pre, f'buffer_load_dwordx4 v[{r}:{r+3}], v2, {srdn}, {so} offen offset:{(j%4)*1024} {pol}'))
        return L
    def steps(L, d=None):
        for pre, ld in L:
            if pre: A(pre.rstrip())
            pace(d)
            A(ld)
    def perm(dst, src, e, njj):
        dd, hi = e >> 1, e & 1
        for jj in range(njj):
            A(f'v_perm_b32 v{dst+jj}, v{src+(2*jj+1)*4+dd}, v{src+2*jj*4+dd}, s{74 if hi else 73}')
    def qset(st):
        T = 48
        src = WQ + st * 32
        xr = 64 + st * 4
        for e in range(9):
            if e < 8: perm(T + (e % 4) * 4, src, e, 4)
            if e >= 1:
                if e == 8: A('s_nop 1')
                t = T + ((e - 1) % 4) * 4
                d = 32 + (e - 1) * 4
                c = '0' if st == 0 else f'a[{d}:{d+3}]'
                A(f'v_mfma_f32_16x16x32_bf16 a[{d}:{d+3}], v[{t}:{t+3}], v[{xr}:{xr+3}], {c}')
    A('s_waitcnt vmcnt(8)')
    qset(0)
    LA = kl(64, 's[44:47]', '0', 1) + vl(144, 's[48:51]', '0', 4)
    steps(LA[:D])
    A(f's_waitcnt vmcnt({D})')
    qset(1)
    A(f'''
    v_lshlrev_b32 v15, 7, v8
    s_lshl_b32 s78, s3, 9
    v_add_u32 v15, s78, v15
    s_mov_b32 exec_lo, 0x00010001
    s_mov_b32 exec_hi, 0x00020002
    s_nop 4
''')
    for e in range(8):
        A(f'ds_write_b128 v15, a[{32+e*4}:{35+e*4}] offset:{LQP + e*16}')
    A('s_mov_b64 exec, -1\ns_waitcnt lgkmcnt(0)\ns_add_u32 s72, s72, 1\ns_barrier        ; B1')
    stamp('b1')
    steps(LA[D:])
    steps(kl(0, 's[36:39]', 's82', 2))
    steps(vl(16, 's[40:43]', 's83', 8))
    A('s_add_u32 s82, s82, 0x8000\ns_add_u32 s83, s83, 0x8000')
    steps(kl(32, 's[36:39]', 's82', 2))
    steps(vl(48, 's[40:43]', 's83', 8))
    A('s_add_u32 s82, s82, 0x8000\ns_add_u32 s83, s83, 0x8000')
    stamp('preb2')
    A('s_barrier        ; B2')
    stamp('b2')
    ACC, TT, S, U, P = 80, 112, 128, 136, 140
    Q = 80
    def qfrag(br):
        for m in range(4):
            A(f'ds_read_b128 a[{Q+m*4}:{Q+m*4+3}], v10 offset:{LQ + br*LQB + m*64}')
    def qk(kb, nt):
        for m in range(4):
            for t in range(nt):
                c = '0' if m == 0 else f'v[{S+t*4}:{S+t*4+3}]'
                A(f'v_mfma_f32_16x16x32_bf16 v[{S+t*4}:{S+t*4+3}], a[{kb+t*16+m*4}:{kb+t*16+m*4+3}], a[{Q+m*4}:{Q+m*4+3}], {c}')
    def roundscale(nv):
        for k in range(nv // 2): A(f'v_cvt_pk_bf16_f32 v{U+k}, v{S+2*k}, v{S+2*k+1}')
        for k in range(nv // 2):
            A(f'v_lshlrev_b32 v{S+2*k}, 16, v{U+k}\nv_and_b32 v{S+2*k+1}, s77, v{U+k}')
        for k in range(nv): A(f'v_mul_f32 v{S+k}, s75, v{S+k}')
        for k in range(nv // 2): A(f'v_cvt_pk_bf16_f32 v{U+k}, v{S+2*k}, v{S+2*k+1}')
        for k in range(nv // 2):
            A(f'v_lshlrev_b32 v{S+2*k}, 16, v{U+k}\nv_and_b32 v{S+2*k+1}, s77, v{U+k}')
    def xg(reg, tmp, op):
        A(f'v_mov_b32 v{tmp}, v{reg}\ns_nop 1\nv_permlane16_swap_b32 v{reg}, v{tmp}\ns_nop 1\n{op} v{reg}, v{reg}, v{tmp}')
        A(f'v_mov_b32 v{tmp}, v{reg}\ns_nop 1\nv_permlane32_swap_b32 v{reg}, v{tmp}\ns_nop 1\n{op} v{reg}, v{reg}, v{tmp}')
    def exps(nv, first):
        A('v_mul_f32 v7, s76, v5')
        for k in range(nv): A(f'v_fma_f32 v{S+k}, v{S+k}, s76, -v7')
        for k in range(nv): A(f'v_exp_f32 v{S+k}, v{S+k}')
        A('s_nop 0')
        for k in range(nv // 2): A(f'v_cvt_pk_bf16_f32 v{P+k}, v{S+2*k}, v{S+2*k+1}')
        if first:
            A(f'v_add_f32 v6, v{S}, v{S+1}')
            for k in range(2, nv): A(f'v_add_f32 v6, v6, v{S+k}')
        else:
            for k in range(0, nv, 2): A(f'v_add_f32 v{S+k}, v{S+k}, v{S+k+1}')
            for k in range(0, nv, 4): A(f'v_add_f32 v{S+k}, v{S+k}, v{S+k+2}')
            A(f'v_add_f32 v{S}, v{S}, v{S+4}\nv_add_f32 v6, v6, v{S}')
    def pv(vb, half):
        njj = 2 if half else 4
        for e in range(9):
            if e < 8: perm(TT + (e % 4) * 4, vb, e, njj)
            if e >= 1:
                if e == 8: A('s_nop 1')
                elif half: A('s_nop 0')
                t = TT + ((e - 1) % 4) * 4
                d = ACC + (e - 1) * 4
                if half:
                    A(f'v_mfma_f32_16x16x16_bf16 v[{d}:{d+3}], v[{t}:{t+1}], v[{P}:{P+1}], 0')
                else:
                    A(f'v_mfma_f32_16x16x32_bf16 v[{d}:{d+3}], v[{t}:{t+3}], v[{P}:{P+3}], v[{d}:{d+3}]')
    def publish(br, bar):
        xg(6, 15, 'v_add_f32')
        A(f'''
    s_mov_b32 exec_lo, 0x00ff00ff
    s_mov_b32 exec_hi, 0x00ff00ff''')
        for e in range(8):
            A(f'ds_write_b128 v11, v[{ACC+e*4}:{ACC+e*4+3}] offset:{LO + br*LOB + e*16}')
        A(f'''
    s_mov_b64 exec, 0xff
    v_lshlrev_b32 v15, 5, v0
    s_lshl_b32 s78, s3, 3
    v_add_u32 v15, s78, v15
    v_mov_b32 v8, v5
    v_mov_b32 v9, v6
    ds_write_b64 v15, v[8:9] offset:{LML + br*256}
    s_mov_b64 exec, -1
    v_lshrrev_b32 v15, 10, v13              ; h
    v_lshlrev_b32 v15, 5, v15
    s_waitcnt lgkmcnt(0)
    s_barrier        ; {bar}''')
        stamp('bar' + str(br))
        A(f'''
    ds_read_b128 v[{TT}:{TT+3}], v15 offset:{LML + br*256}
    ds_read_b128 v[{TT+4}:{TT+7}], v15 offset:{LML + br*256 + 16}''')
        for w in range(4):
            o = (LO + br * LOB + w * LOW)
            A(f'v_add_u32 v7, {o}, v12\nds_read2_b64 v[{ACC+w*4}:{ACC+w*4+3}], v7 offset0:0 offset1:32')
        m = [TT, TT + 2, TT + 4, TT + 6]; l = [TT + 1, TT + 3, TT + 5, TT + 7]
        R = S
        A(f'''
    s_lshl_b32 s78, s2, 13
    s_add_u32 s78, s78, {PART + br * 0x200000}
    v_mov_b32 v{R+1}, s72
    v_mov_b32 v{R+3}, s72
    v_mov_b32 v{R+5}, s72
    v_mov_b32 v{R+7}, s72
    v_mov_b32 v{U+1}, s72
    v_mov_b32 v{U+3}, s72
    s_waitcnt lgkmcnt(4)
    v_max3_f32 v{U}, v{m[0]}, v{m[1]}, v{m[2]}
    v_max_f32 v{U}, v{U}, v{m[3]}
    v_mul_f32 v7, s76, v{U}''')
        for w in range(4): A(f'v_fma_f32 v{m[w]}, v{m[w]}, s76, -v7')
        for w in range(4): A(f'v_exp_f32 v{m[w]}, v{m[w]}')
        A('s_waitcnt lgkmcnt(0)')
        A(f'v_mul_f32 v{U+2}, v{m[0]}, v{l[0]}')
        for k in range(4): A(f'v_mul_f32 v{R+2*k}, v{m[0]}, v{ACC+k}')
        for w in range(1, 4):
            A(f'v_fmac_f32 v{U+2}, v{m[w]}, v{l[w]}')
            for k in range(4): A(f'v_fmac_f32 v{R+2*k}, v{m[w]}, v{ACC+w*4+k}')
        A(f'''
    buffer_store_dwordx4 v[{R}:{R+3}], v13, s[64:67], s78 offen {sp}
    buffer_store_dwordx4 v[{R+4}:{R+7}], v13, s[64:67], s78 offen offset:512 {sp}
    s_lshl_b32 s78, s30, 13
    s_lshl_b32 s79, s31, 4
    s_add_u32 s78, s78, s79
    s_add_u32 s78, s78, {ML + br * 0x8000}
    s_mov_b32 exec_lo, 1
    s_mov_b32 exec_hi, 1
    buffer_store_dwordx4 v[{U}:{U+3}], v13, s[64:67], s78 offen {sp}
    s_mov_b64 exec, -1''')
    qfrag(0)
    A('s_waitcnt vmcnt(32) lgkmcnt(0)')
    qk(64, 1)
    qfrag(1)
    A('s_nop 4')
    roundscale(4)
    A(f'v_max3_f32 v5, v{S}, v{S+1}, v{S+2}\nv_max_f32 v5, v5, v{S+3}')
    xg(5, 15, 'v_max_f32')
    exps(4, True)
    pv(144, True)
    A('s_nop 4')
    publish(0, 'B3a')
    for k in range(32): A(f'v_mov_b32 v{ACC+k}, 0')
    A('v_mov_b32 v5, 0xff7fffff\nv_mov_b32 v6, 0\ns_mov_b32 s81, 0')
    stamp('loop')
    DW = opt.get('DW', D)
    DL = opt.get('DL', D)
    W0 = opt.get('W0', 0)
    W1 = opt.get('W1', min(DW, 8))
    W2 = opt.get('W2', min(W1 + 1, 8))
    def wol(dst, cg):
        L = []
        for j in range(8):
            off = (8 * (j & 3) + (j >> 2)) * 2048 + cg * 256
            r = dst + j * 4
            lo = off & 4095
            L.append((f's_mov_b32 s70, {off - lo}\n', f'buffer_load_dwordx4 v[{r}:{r+3}], v14, s[56:59], s70 offen offset:{lo} {pol}'))
        return L
    A('L_loop:')
    for b in range(2):
        kb, vb = b * 32, 16 + b * 32
        A('s_waitcnt vmcnt(24)')
        qk(kb, 2)
        A('s_nop 7')
        roundscale(8)
        A(f'v_max3_f32 v8, v{S}, v{S+1}, v5\nv_max3_f32 v9, v{S+2}, v{S+3}, v{S+4}\nv_max3_f32 v8, v8, v{S+5}, v{S+6}\nv_max3_f32 v8, v8, v9, v{S+7}')
        xg(8, 15, 'v_max_f32')
        A(f'''
    v_cmp_gt_f32 vcc, v8, v5
    s_cbranch_vccz L_nors{b}
    v_sub_f32 v9, v5, v8
    v_mul_f32 v9, s76, v9
    v_exp_f32 v9, v9
    v_mov_b32 v5, v8
    v_mul_f32 v6, v6, v9''')
        for k in range(32): A(f'v_mul_f32 v{ACC+k}, v{ACC+k}, v9')
        A(f'L_nors{b}:')
        exps(8, False)
        A(f's_cmp_eq_u32 s81, 3\ns_cbranch_scc1 L_s1alt{b}')
        steps(kl(kb, 's[36:39]', 's82', 2), DL)
        A(f's_add_u32 s82, s82, 0x8000\nL_s1ret{b}:')
        A(f's_waitcnt vmcnt(16)')
        pv(vb, False)
        A(f's_cmp_eq_u32 s81, 3\ns_cbranch_scc1 L_s2alt{b}')
        steps(vl(vb, 's[40:43]', 's83', 8), DL)
        A('s_add_u32 s83, s83, 0x8000')
        if b == 0: A('L_s2ret0:')
        else: A('s_add_u32 s81, s81, 1\ns_branch L_loop')
    WL0, WL1 = wol(16, 0), wol(48, 1)
    A('.set L_s1alt0, L_s1ret0')
    A('L_s2alt0:')
    steps(WL0[:W0], DL); A(f's_waitcnt vmcnt({8 + W0})\ns_branch L_s2ret0')
    A('L_s1alt1:')
    steps(WL0[W0:W1], DW); A(f's_waitcnt vmcnt({W1})\ns_branch L_s1ret1')
    A('L_s2alt1:')
    stamp('vlast')
    steps(WL0[W1:W2], DW)
    A('s_nop 4')
    publish(1, 'B3')
    stamp('pub')
    steps(WL0[W2:] + WL1, DW)
    A('s_waitcnt vmcnt(8)')
    for e in range(8): perm(80 + e * 4, 16, e, 4)
    A('s_waitcnt vmcnt(0)')
    stamp('wo')
    for e in range(8): perm(112 + e * 4, 48, e, 4)
    A(f'''
    v_lshrrev_b32 v8, 4, v0
    v_lshlrev_b32 v15, 4, v8                ; g*16
    v_and_b32 v9, 15, v0
    v_lshlrev_b32 v13, 6, v9
    v_add_u32 v13, v13, v15                 ; 64c + 16g
    s_lshl_b32 s78, s2, 13
    s_lshl_b32 s79, s3, 11
    s_add_u32 s78, s78, s79
    s_add_u32 s78, s78, {OP}
    v_mov_b32 v17, s72
    v_mov_b32 v19, s72
    v_mov_b32 v21, s72
    v_mov_b32 v23, s72
    s_barrier        ; B4
    ds_read_b128 v[24:27], v15 offset:{LOF}
    s_waitcnt lgkmcnt(0)''')
    stamp('b4')
    for x in range(16):
        A(f'v_mfma_f32_16x16x32_bf16 a[{x*4}:{x*4+3}], v[24:27], v[{80+x*4}:{83+x*4}], 0')
    A('s_mov_b64 exec, 0xffff\ns_nop 6')
    for gg in range(4):
        for k, x in enumerate([2 * gg, 2 * gg + 1, 8 + 2 * gg, 9 + 2 * gg]):
            A(f'v_accvgpr_read_b32 v{16+2*k}, a{x*4}')
        if gg < 3: A('s_lshl_b64 exec, exec, 16')
    A(f'''
    s_mov_b64 exec, -1
    buffer_store_dwordx4 v[16:19], v13, s[64:67], s78 offen {sp}
    buffer_store_dwordx4 v[20:23], v13, s[64:67], s78 offen offset:1024 {sp}''')
    stamp('end')
    A('s_branch L_fin')
    A('L_sync:')
    insync[0] = 1
    if opt.get('nosync'):
        A('s_waitcnt lgkmcnt(0)\ns_barrier\ns_barrier\ns_barrier\ns_barrier\ns_barrier\ns_branch L_fin')
    A('s_waitcnt lgkmcnt(0)\ns_load_dword s72, s[28:29], 0')
    srd(64, 28, 29, WSB if WSB else None, WSSZ)
    srd(68, 24, 25, None, 4096)
    A(f'''
    v_lshrrev_b32 v3, 5, v0
    v_lshlrev_b32 v3, 5, v3
    v_and_b32 v15, 3, v0
    v_lshl_add_u32 v3, v15, 3, v3
    v_bfe_u32 v15, v0, 2, 3
    v_add_u32 v3, v3, v15
    v_lshlrev_b32 v3, 3, v3
    v_lshlrev_b32 v4, 2, v0                 ; lane*4
    v_lshlrev_b32 v5, 15, v8
    v_lshl_add_u32 v5, v9, 9, v5
    v_add_u32 v5, 504, v5
    s_and_b32 s34, s33, 63
    s_lshr_b32 s35, s33, 6
    s_lshl_b32 s78, s32, 16
    s_lshl_b32 s79, s35, 15
    s_add_u32 s78, s78, s79
    s_lshl_b32 s79, s34, 9
    s_add_u32 s78, s78, s79
    s_add_u32 s78, s78, {QP}
    s_lshl_b32 s80, s30, 13
    s_add_u32 s80, s80, {QP}
    s_waitcnt lgkmcnt(0)
    s_add_u32 s72, s72, 1
    s_barrier        ; B1''')
    stamp('b1')
    for k in range(8): A(f'ds_read_b32 v{16+k}, v4 offset:{LQP + k*256}')
    A(f'''
    v_mov_b32 v25, s72
    s_waitcnt lgkmcnt(0)
    v_add_f32 v16, v16, v17
    v_add_f32 v18, v18, v19
    v_add_f32 v20, v20, v21
    v_add_f32 v22, v22, v23
    v_add_f32 v16, v16, v18
    v_add_f32 v20, v20, v22
    v_add_f32 v24, v16, v20
    {QST}
    s_mov_b32 s81, 0
L_qpoll:
    buffer_load_dwordx2 v[16:17], v5, s[64:67], s80 offen {lp}
    s_add_u32 s81, s81, 1
    s_cmp_gt_u32 s81, {SPIN}
    s_cbranch_scc1 L_qgo
    s_waitcnt vmcnt(0)
    v_cmp_ne_u32 vcc, s72, v17
    s_cbranch_vccnz L_qpoll
L_qgo:''')
    stamp('qpre')
    cstamp('cqpre')
    A('s_mov_b32 s81, 0')
    A('L_qgather:')
    for br in range(2):
        for half in range(2):
            for i in range(8):
                off = br * 0x10000 + half * 0x8000 + i * 1024
                r = 16 + (br * 16 + half * 8 + i) * 4
                if i % 4 == 0: A(f's_add_u32 s70, s80, {off}')
                A(f'buffer_load_dwordx4 v[{r}:{r+3}], v2, s[64:67], s70 offen offset:{(i%4)*1024} {opt.get("qlp", lp)}')
    A(f's_add_u32 s81, s81, 1\ns_waitcnt vmcnt(0)')
    stamp('qg1')
    for k in range(32):
        A(f'v_cmpx_eq_u32 vcc, s72, v{17+4*k}\nv_cmpx_eq_u32 vcc, s72, v{19+4*k}')
    A(f'''
    s_cmp_eq_u64 exec, -1
    s_mov_b64 exec, -1
    s_cbranch_scc1 L_qok
    s_cmp_gt_u32 s81, {SPIN}
    s_cbranch_scc0 L_qgather
L_qok:''')
    stamp('qgat')
    cstamp('cqgat')
    for br in range(2):
        for i in range(8):
            r = 16 + (br * 16 + i) * 4
            A(f'v_add_f32 v{r}, v{r}, v{r+32}\nv_add_f32 v{r+2}, v{r+2}, v{r+34}\nv_cvt_pk_bf16_f32 v{r}, v{r}, v{r+2}')
            A(f'ds_write_b32 v4, v{r} offset:{LQ + br*LQB + i*272}')
    A(f'''
    s_lshr_b32 s34, s33, 2
    s_and_b32 s35, s33, 3
    s_lshl_b32 s78, s32, 21
    s_lshr_b32 s79, s34, 3
    s_lshl_b32 s79, s79, 19
    s_add_u32 s78, s78, s79
    s_and_b32 s79, s34, 7
    s_lshl_b32 s79, s79, 10
    s_add_u32 s78, s78, s79
    s_lshl_b32 s79, s35, 8
    s_add_u32 s78, s78, s79
    s_add_u32 s78, s78, {PART}
    s_lshl_b32 s79, s32, 15
    s_lshl_b32 s80, s34, 10
    s_add_u32 s79, s79, s80
    s_add_u32 s79, s79, {ML}
    v_lshlrev_b32 v5, 13, v8
    v_lshl_add_u32 v5, v9, 4, v5            ; g*8192 + c*16
    v_and_b32 v6, 3, v0
    v_lshlrev_b32 v6, 6, v6
    v_lshrrev_b32 v15, 2, v0
    v_lshl_add_u32 v6, v15, 2, v6
    v_lshlrev_b32 v7, 6, v8
    s_waitcnt lgkmcnt(0)
    s_barrier        ; B2''')
    stamp('b2')
    A(f'''
    s_barrier        ; B3a
    s_cmp_eq_u32 s32, 0
    s_cbranch_scc1 L_pg
    s_barrier        ; B3 (B role)
L_pg:''')
    stamp('pgs')
    A('s_mov_b32 s81, 0')
    if opt.get('mlpre', 1):
        A(f'''
    s_cmp_eq_u32 s32, 0
    s_cbranch_scc0 L_pgather
L_mlpoll:
    buffer_load_dwordx4 v[12:15], v2, s[64:67], s79 offen {lp}
    s_add_u32 s81, s81, 1
    s_cmp_gt_u32 s81, {SPIN}
    s_cbranch_scc1 L_pgather
    s_waitcnt vmcnt(0)
    v_cmp_ne_u32 vcc, s72, v15
    s_cbranch_vccnz L_mlpoll''')
    A('L_pgather:')
    A(f'buffer_load_dwordx4 v[12:15], v2, s[64:67], s79 offen {lp}')
    for i in range(16):
        r = 16 + i * 4
        if i == 0: A(f'buffer_load_dwordx4 v[{r}:{r+3}], v5, s[64:67], s78 offen {lp}')
        else: A(f's_add_u32 s70, s78, {i * 4 * 8192}\nbuffer_load_dwordx4 v[{r}:{r+3}], v5, s[64:67], s70 offen {lp}')
    A(f's_add_u32 s81, s81, 1\ns_waitcnt vmcnt(0)')
    for k in range(17):
        A(f'v_cmpx_eq_u32 vcc, s72, v{13+4*k}\nv_cmpx_eq_u32 vcc, s72, v{15+4*k}')
    A(f'''
    s_cmp_eq_u64 exec, -1
    s_mov_b64 exec, -1
    s_cbranch_scc1 L_pok
    s_cmp_gt_u32 s81, {SPIN}
    s_cbranch_scc0 L_pgather
L_pok:''')
    stamp('pgok')
    cstamp('cpg')
    def allred(reg, tmp, op):
        for n in (1, 2, 4, 8):
            A(f's_nop 1\n{op}_dpp v{reg}, v{reg}, v{reg} row_ror:{n} row_mask:0xf bank_mask:0xf')
        xg(reg, tmp, op)
    A('s_nop 2\nv_mov_b32 v10, v12')
    allred(10, 11, 'v_max_f32')
    A(f'''
    v_sub_f32 v12, v12, v10
    v_mul_f32 v12, s76, v12
    v_exp_f32 v12, v12
    s_nop 0
    ds_write_b32 v6, v12 offset:{LW}
    v_mul_f32 v14, v14, v12
    s_waitcnt lgkmcnt(0)''')
    for k in range(4): A(f'ds_read_b128 v[{80+4*k}:{83+4*k}], v7 offset:{LW + 16*k}')
    allred(14, 11, 'v_add_f32')
    A('v_rcp_f32 v14, v14\ns_waitcnt lgkmcnt(0)')
    A('v_mul_f32 v10, v80, v16\nv_mul_f32 v11, v80, v18\nv_mul_f32 v12, v81, v20\nv_mul_f32 v13, v81, v22')
    for i in range(2, 16):
        a = 10 + 2 * (i & 1)
        A(f'v_fmac_f32 v{a}, v{80+i}, v{16+4*i}\nv_fmac_f32 v{a+1}, v{80+i}, v{18+4*i}')
    A('v_add_f32 v10, v10, v12\nv_add_f32 v11, v11, v13')
    xg(10, 12, 'v_add_f32'); xg(11, 12, 'v_add_f32')
    A(f'''
    v_mul_f32 v10, v10, v14
    v_mul_f32 v11, v11, v14
    v_cvt_pk_bf16_f32 v10, v10, v11
    s_mov_b64 exec, 0xffff
    ds_write_b32 v4, v10 offset:{LOF}
    s_mov_b64 exec, -1
    s_lshl_b32 s78, s32, 20                 ; br*128*8192
    s_lshl_b32 s79, s33, 6
    s_add_u32 s78, s78, s79
    s_add_u32 s78, s78, {OP}
    v_lshrrev_b32 v5, 2, v0
    v_lshlrev_b32 v5, 13, v5
    v_and_b32 v6, 3, v0
    v_lshl_add_u32 v5, v6, 4, v5            ; (l>>2)*8192 + (l&3)*16
    s_cmp_eq_u32 s32, 0
    s_cbranch_scc0 L_nob3
    s_barrier        ; B3 (A role)
L_nob3:
    s_waitcnt lgkmcnt(0)
    s_barrier        ; B4''')
    stamp('b4')
    A('s_mov_b32 s81, 0\nL_fgather:')
    for i in range(8):
        r = 16 + i * 4
        if i == 0: A(f'buffer_load_dwordx4 v[{r}:{r+3}], v5, s[64:67], s78 offen {lp}')
        else: A(f's_add_u32 s70, s78, {i * 16 * 8192}\nbuffer_load_dwordx4 v[{r}:{r+3}], v5, s[64:67], s70 offen {lp}')
    A(f's_add_u32 s81, s81, 1\ns_waitcnt vmcnt(0)')
    for k in range(8):
        A(f'v_cmpx_eq_u32 vcc, s72, v{17+4*k}\nv_cmpx_eq_u32 vcc, s72, v{19+4*k}')
    A(f'''
    s_cmp_eq_u64 exec, -1
    s_mov_b64 exec, -1
    s_cbranch_scc1 L_fok
    s_cmp_gt_u32 s81, {SPIN}
    s_cbranch_scc0 L_fgather
L_fok:
    s_nop 2''')
    stamp('fok')
    cstamp('cf')
    for st in (16, 8, 4):
        for r in range(16, 16 + st, 4):
            A(f'v_add_f32 v{r}, v{r}, v{r+st}\nv_add_f32 v{r+2}, v{r+2}, v{r+st+2}')
    for n in (4, 8):
        A(f's_nop 1\nv_add_f32_dpp v16, v16, v16 row_ror:{n} row_mask:0xf bank_mask:0xf\nv_add_f32_dpp v18, v18, v18 row_ror:{n} row_mask:0xf bank_mask:0xf')
    xg(16, 12, 'v_add_f32'); xg(18, 12, 'v_add_f32')
    A(f'''
    v_cvt_pk_bf16_f32 v16, v16, v18
    s_lshl_b32 s78, s2, 4
    s_mov_b64 exec, 0xf
    buffer_store_dword v16, v4, s[68:71], s78 offen
    s_cmp_eq_u32 s2, 0
    s_cbranch_scc0 L_noep
    s_mov_b64 exec, 1
    v_mov_b32 v17, s72
    global_store_dword v4, v17, s[28:29] sc1
L_noep:
    s_mov_b64 exec, -1''')
    stamp('end')
    A('L_fin:')
    if stamps:
        A('s_waitcnt vmcnt(0) lgkmcnt(0)')
        for k in range(16): A(f'v_mov_b32 v{16+k}, s{84+k}')
        A(f'''
    s_mul_i32 s78, s2, 5
    s_add_u32 s78, s78, s3
    s_lshl_b32 s78, s78, 6
    s_add_u32 s78, s78, {STAMP}
    v_mov_b32 v1, s78
    s_mov_b64 exec, 1''')
        for k in range(4): A(f'global_store_dwordx4 v1, v[{16+4*k}:{19+4*k}], s[28:29] offset:{16*k}')
    A('''
L_end:
    s_endpgm
.section .rodata,"a"
.p2align 6
''')
    A(kdesc(name, 256, 102, 160).replace('.end_amdhsa', '  .amdhsa_float_denorm_mode_32 3\n.end_amdhsa'))
    t = A.text()
    if NOST:
        t = '\n'.join(('s_nop 0' if 'buffer_store' in l else l) for l in t.split('\n'))
    open(fn, 'w').write(t)

if __name__ == '__main__':
    import json
    for spec in sys.argv[1:]:
        fn, _, o = spec.partition(':')
        opt = {}
        for kv in filter(None, o.split(',')):
            k, _, v = kv.partition('=')
            try: v = int(v, 0)
            except ValueError: v = v.replace('+', ' ')
            opt[k] = v
        gen(fn, stamps=bool(opt.get('st')), pol=opt.get('pol', 'nt'), opt=opt)
```

```python
import sys
from asmlib import *

QP   = 0x1000
PART = 0x40000
ML   = 0x480000
OP   = 0x500000
WSSZ = 0x700000
STAMP = 0x10000000
LQP = 0
LQ  = 2048
LQB = 8 * 272
LO  = 6656
LOW = 8 * 528
LOB = 4 * LOW
LML = LO + 2 * LOB
LOF = LML + 512
LW  = LOF + 64
LDSSZ = LW + 256
SPIN = 400000

def gen(fn, stamps=False, pol='nt', opt=None):
    opt = opt or {}
    WSB = opt.get('wsb', 0)
    sp = opt.get('sp', 'sc1')
    NOST = opt.get('nost')
    lp = opt.get('lp', 'sc1')
    A = Asm()
    name = KN + '_kernel'
    A(open('cdna_kernels/' + KN + '.s.ref').read().split('; Override launch')[0].rstrip('\n'))
    A(header([(None, 256, 320, LDSSZ)]))
    A(kstart(name))
    DIAG1 = 's_waitcnt vmcnt(0)\ns_memrealtime s[96:97]\n' if opt.get('diag') else ''
    insync = [0]
    PRE = ''
    if opt.get('pre'):
        n = opt['pre']
        PRE = f'''
    s_lshr_b32 s36, s2, 6
    s_lshl_b32 s36, s36, 24
    s_and_b32 s37, s2, 63
    s_lshl_b32 s37, s37, 2
    s_add_u32 s37, s37, s3
    s_mul_i32 s37, s37, {60*1024}
    s_add_u32 s36, s36, s37
    s_add_u32 s40, s6, s36
    s_addc_u32 s41, s7, 0
    s_mov_b32 s42, 0x10000
    s_mov_b32 s43, 0x20000
    s_add_u32 s44, s8, s36
    s_addc_u32 s45, s9, 0
    s_mov_b32 s46, 0x10000
    s_mov_b32 s47, 0x20000
    s_mov_b32 s70, 0
L_pre:
    s_waitcnt vmcnt(14)
    buffer_load_dwordx4 v[16:19], v2, s[40:43], s70 offen {pol}
    buffer_load_dwordx4 v[20:23], v2, s[44:47], s70 offen {pol}
    s_add_u32 s70, s70, 1024
    s_cmp_lt_u32 s70, {n*1024}
    s_cbranch_scc1 L_pre
    s_waitcnt vmcnt(0)
'''
    QST = {'st': f'buffer_store_dwordx2 v[24:25], v3, s[64:67], s78 offen {sp}',
           'sw': 'buffer_atomic_swap_x2 v[24:25], v3, s[64:67], s78 offen sc1',
           'swr': 'buffer_atomic_swap_x2 v[24:25], v3, s[64:67], s78 offen sc0 sc1',
           'sw0': 'buffer_atomic_swap_x2 v[24:25], v3, s[64:67], s78 offen',
           'stwb': 'buffer_store_dwordx2 v[24:25], v3, s[64:67], s78 offen\ns_waitcnt vmcnt(0)\nbuffer_wbl2 sc1',
           }[opt.get('qst', 'st')]
    CS = opt.get('cs', 'start.b1.b2.loop.vlast.pub.b4.end').split('.')
    SS = opt.get('ss', 'start.b1.qpre.qgat.pgs.pgok.b4.end').split('.')
    def stamp(nm):
        L = SS if insync[0] else CS
        if stamps and nm in L:
            k = L.index(nm)
            A(f's_memrealtime s[{84 + 2 * k}:{85 + 2 * k}]')
    def cstamp(nm):
        L = SS if insync[0] else CS
        if stamps and nm in L:
            k = L.index(nm)
            A(f's_waitcnt lgkmcnt(0)\ns_mul_i32 s{84+2*k}, s81, 100\ns_add_u32 s{84+2*k}, s{84+2*k}, s84\ns_addc_u32 s{85+2*k}, s85, 0')
    def srd(d, lo, hi, off, size):
        if off is None:
            A(f's_mov_b32 s{d}, s{lo}\ns_mov_b32 s{d+1}, s{hi}')
        else:
            A(f's_add_u32 s{d}, s{lo}, {off}\ns_addc_u32 s{d+1}, s{hi}, 0')
        A(f's_mov_b32 s{d+2}, {size}\ns_mov_b32 s{d+3}, 0x20000')
    A(f'''
    s_cmp_ge_u32 s2, 256
    s_cbranch_scc1 L_end
    s_load_dwordx16 s[4:19], s[0:1], 0
    s_load_dwordx8 s[20:27], s[0:1], 64
    s_load_dwordx2 s[28:29], s[0:1], 96     ; ws
''')
    stamp('start')
    if opt.get('hold'): A('s_memrealtime s[84:85]')
    A(f'''
    v_lshrrev_b32 v1, 6, v0
    v_and_b32 v0, 63, v0
    v_readfirstlane_b32 s3, v1
    s_lshr_b32 s30, s2, 6
    s_and_b32 s31, s2, 63                   ; chunk
    s_lshr_b32 s32, s2, 7
    s_and_b32 s33, s2, 127
    v_lshlrev_b32 v2, 4, v0                 ; lane*16
    v_lshrrev_b32 v8, 4, v0                 ; g
    v_and_b32 v9, 15, v0                    ; n
    s_mov_b32 s73, 0x05040100
    s_mov_b32 s74, 0x07060302
    s_mov_b32 s75, 0x3db504f3               ; 128^-0.5
    s_mov_b32 s76, 0x3fb8aa3b               ; log2(e)
    s_mov_b32 s77, 0xffff0000
    s_cmp_eq_u32 s3, 4
    s_cbranch_scc1 L_sync
''')
    A(f'''
    ; vWQ (v3) = (l>>3)*8*8192 + (l&7)*16
    v_lshrrev_b32 v3, 3, v0
    v_lshlrev_b32 v3, 16, v3
    v_and_b32 v15, 7, v0
    v_lshl_add_u32 v3, v15, 4, v3
    ; vX (v4) = (2g + (n&1))*16
    v_and_b32 v15, 1, v0
    v_lshl_add_u32 v4, v8, 1, v15
    v_lshlrev_b32 v4, 4, v4
    ; vK (v1) = (4*(n&3) + (n>>2))*256 + g*16
    v_and_b32 v15, 3, v9
    v_lshrrev_b32 v1, 2, v9
    v_lshl_add_u32 v1, v15, 2, v1
    v_lshlrev_b32 v1, 8, v1
    v_lshl_add_u32 v1, v8, 4, v1
    {'v_mov_b32 v1, v2' if opt.get('klin') else ''}
    s_and_b32 s34, s33, 63
    s_lshr_b32 s35, s33, 6
    s_lshl_b32 s78, s34, 7                  ; cg*128 B
    s_lshl_b32 s79, s35, 22
    s_add_u32 s78, s78, s79
    s_lshl_b32 s79, s3, 20
    s_add_u32 s78, s78, s79
    s_lshl_b32 s80, s35, 10                 ; x: half*1024
    s_lshl_b32 s79, s3, 8
    s_add_u32 s80, s80, s79                 ; + wave*256
    s_waitcnt lgkmcnt(0)
    s_cmp_eq_u32 s32, 0
    s_cselect_b32 s52, s10, s20
    s_cselect_b32 s53, s11, s21
    s_cselect_b32 s60, s4, s14
    s_cselect_b32 s61, s5, s15
    s_cselect_b32 s56, s12, s22
    s_cselect_b32 s57, s13, s23
    s_add_u32 s52, s52, s78
    s_addc_u32 s53, s53, 0
    s_sub_u32 s54, 0x800000, s78
    s_mov_b32 s55, 0x20000
    s_mov_b32 s62, 2048
    s_mov_b32 s63, 0x20000
{PRE}
    buffer_load_dwordx4 v[64:67], v4, s[60:63], s80 offen
    buffer_load_dwordx4 v[68:71], v4, s[60:63], s80 offen offset:128
''')
    WQ = 80
    for st in range(2):
        for j in range(8):
            off = (st * 64 + j) * 8192
            r = WQ + (st * 8 + j) * 4
            if off == 0:
                A(f'buffer_load_dwordx4 v[{r}:{r+3}], v3, s[52:55], 0 offen {pol}')
            else:
                A(f's_mov_b32 s70, {off}\nbuffer_load_dwordx4 v[{r}:{r+3}], v3, s[52:55], s70 offen {pol}')
    A(f'''
    s_load_dword s72, s[28:29], 0           ; epoch
    s_lshl_b32 s78, s30, 24
    s_lshl_b32 s79, s31, 18
    s_add_u32 s79, s79, s78                 ; B offset
    s_lshl_b32 s80, s31, 14
    s_add_u32 s80, s80, s78
    s_add_u32 s80, s80, {(65536 - 4096) * 256}
    s_lshl_b32 s81, s3, 12
    s_add_u32 s80, s80, s81
''')
    srd(36, 16, 17, 's79', 0x40000); srd(40, 18, 19, 's79', 0x40000)
    srd(44, 6, 7, 's80', 0x1000); srd(48, 8, 9, 's80', 0x1000)
    srd(64, 28, 29, WSB if WSB else None, WSSZ)
    A(f'''
    s_lshl_b32 s78, s33, 16
    s_add_u32 s56, s56, s78
    s_addc_u32 s57, s57, 0
    s_mov_b32 s58, 0x10000
    s_mov_b32 s59, 0x20000
    s_lshl_b32 s82, s3, 13
    s_mov_b32 s83, s82                      ; (V)
    v_and_b32 v15, 7, v9
    v_mul_u32_u24 v10, 272, v15
    v_lshl_add_u32 v10, v8, 4, v10
    v_mul_u32_u24 v11, 528, v15
    v_lshl_add_u32 v11, v8, 7, v11
    s_mul_i32 s78, s3, {LOW}
    v_add_u32 v11, s78, v11
    v_lshrrev_b32 v15, 5, v0
    s_lshl_b32 s78, s3, 1
    v_add_u32 v15, s78, v15                 ; h
    v_mul_u32_u24 v12, 528, v15
    v_and_b32 v7, 31, v0
    v_lshl_add_u32 v12, v7, 3, v12
    v_lshlrev_b32 v13, 10, v15
    v_lshl_add_u32 v13, v7, 4, v13
    v_lshlrev_b32 v14, 12, v8
    v_lshl_add_u32 v14, v9, 4, v14
    s_lshl_b32 s78, s3, 9
    v_add_u32 v14, s78, v14
''')
    D = opt.get('D', 6)
    KST = 1024 if opt.get('klin') else 64
    def pace(d=None):
        A(f's_waitcnt vmcnt({(d or D) - 1})')
    def kl(dst, srdn, soff, n16):
        L = []
        for t in range(n16):
            so = soff if t == 0 else 's70'
            for m in range(4):
                r = dst + t * 16 + m * 4
                pre = f's_add_u32 s70, {soff}, 4096\n' if (t == 1 and m == 0) else ''
                L.append((pre, f'buffer_load_dwordx4 a[{r}:{r+3}], v1, {srdn}, {so} offen offset:{m*KST} {pol}'))
        return L
    def vl(dst, srdn, soff, n):
        L = []
        for j in range(n):
            so = soff if j < 4 else 's70'
            r = dst + j * 4
            pre = f's_add_u32 s70, {soff}, 4096\n' if j == 4 else ''
            L.append((pre, f'buffer_load_dwordx4 v[{r}:{r+3}], v2, {srdn}, {so} offen offset:{(j%4)*1024} {pol}'))
        return L
    def steps(L, d=None):
        for pre, ld in L:
            if pre: A(pre.rstrip())
            pace(d)
            A(ld)
    def perm(dst, src, e, njj):
        dd, hi = e >> 1, e & 1
        for jj in range(njj):
            A(f'v_perm_b32 v{dst+jj}, v{src+(2*jj+1)*4+dd}, v{src+2*jj*4+dd}, s{74 if hi else 73}')
    def qset(st):
        T = 48
        src = WQ + st * 32
        xr = 64 + st * 4
        for e in range(9):
            if e < 8: perm(T + (e % 4) * 4, src, e, 4)
            if e >= 1:
                if e == 8: A('s_nop 1')
                t = T + ((e - 1) % 4) * 4
                d = 32 + (e - 1) * 4
                c = '0' if st == 0 else f'a[{d}:{d+3}]'
                A(f'v_mfma_f32_16x16x32_bf16 a[{d}:{d+3}], v[{t}:{t+3}], v[{xr}:{xr+3}], {c}')
    A('s_waitcnt vmcnt(8)')
    qset(0)
    LA = kl(64, 's[44:47]', '0', 1) + vl(144, 's[48:51]', '0', 4)
    steps(LA[:D])
    A(f's_waitcnt vmcnt({D})')
    qset(1)
    A(f'''
    v_lshlrev_b32 v15, 7, v8
    s_lshl_b32 s78, s3, 9
    v_add_u32 v15, s78, v15
    s_mov_b32 exec_lo, 0x00010001
    s_mov_b32 exec_hi, 0x00020002
    s_nop 4
''')
    for e in range(8):
        A(f'ds_write_b128 v15, a[{32+e*4}:{35+e*4}] offset:{LQP + e*16}')
    A('s_mov_b64 exec, -1\ns_waitcnt lgkmcnt(0)\ns_add_u32 s72, s72, 1\ns_barrier        ; B1')
    stamp('b1')
    steps(LA[D:])
    steps(kl(0, 's[36:39]', 's82', 2))
    steps(vl(16, 's[40:43]', 's83', 8))
    A('s_add_u32 s82, s82, 0x8000\ns_add_u32 s83, s83, 0x8000')
    steps(kl(32, 's[36:39]', 's82', 2))
    steps(vl(48, 's[40:43]', 's83', 8))
    A('s_add_u32 s82, s82, 0x8000\ns_add_u32 s83, s83, 0x8000')
    stamp('preb2')
    A('s_barrier        ; B2')
    stamp('b2')
    ACC, TT, S, U, P = 80, 112, 128, 136, 140
    Q = 80
    def qfrag(br):
        for m in range(4):
            A(f'ds_read_b128 a[{Q+m*4}:{Q+m*4+3}], v10 offset:{LQ + br*LQB + m*64}')
    def qk(kb, nt):
        for m in range(4):
            for t in range(nt):
                c = '0' if m == 0 else f'v[{S+t*4}:{S+t*4+3}]'
                A(f'v_mfma_f32_16x16x32_bf16 v[{S+t*4}:{S+t*4+3}], a[{kb+t*16+m*4}:{kb+t*16+m*4+3}], a[{Q+m*4}:{Q+m*4+3}], {c}')
    def roundscale(nv):
        for k in range(nv // 2): A(f'v_cvt_pk_bf16_f32 v{U+k}, v{S+2*k}, v{S+2*k+1}')
        for k in range(nv // 2):
            A(f'v_lshlrev_b32 v{S+2*k}, 16, v{U+k}\nv_and_b32 v{S+2*k+1}, s77, v{U+k}')
        for k in range(nv): A(f'v_mul_f32 v{S+k}, s75, v{S+k}')
        for k in range(nv // 2): A(f'v_cvt_pk_bf16_f32 v{U+k}, v{S+2*k}, v{S+2*k+1}')
        for k in range(nv // 2):
            A(f'v_lshlrev_b32 v{S+2*k}, 16, v{U+k}\nv_and_b32 v{S+2*k+1}, s77, v{U+k}')
    def xg(reg, tmp, op):
        A(f'v_mov_b32 v{tmp}, v{reg}\ns_nop 1\nv_permlane16_swap_b32 v{reg}, v{tmp}\ns_nop 1\n{op} v{reg}, v{reg}, v{tmp}')
        A(f'v_mov_b32 v{tmp}, v{reg}\ns_nop 1\nv_permlane32_swap_b32 v{reg}, v{tmp}\ns_nop 1\n{op} v{reg}, v{reg}, v{tmp}')
    def exps(nv, first):
        A('v_mul_f32 v7, s76, v5')
        for k in range(nv): A(f'v_fma_f32 v{S+k}, v{S+k}, s76, -v7')
        for k in range(nv): A(f'v_exp_f32 v{S+k}, v{S+k}')
        A('s_nop 0')
        for k in range(nv // 2): A(f'v_cvt_pk_bf16_f32 v{P+k}, v{S+2*k}, v{S+2*k+1}')
        if first:
            A(f'v_add_f32 v6, v{S}, v{S+1}')
            for k in range(2, nv): A(f'v_add_f32 v6, v6, v{S+k}')
        else:
            for k in range(0, nv, 2): A(f'v_add_f32 v{S+k}, v{S+k}, v{S+k+1}')
            for k in range(0, nv, 4): A(f'v_add_f32 v{S+k}, v{S+k}, v{S+k+2}')
            A(f'v_add_f32 v{S}, v{S}, v{S+4}\nv_add_f32 v6, v6, v{S}')
    def pv(vb, half):
        njj = 2 if half else 4
        for e in range(9):
            if e < 8: perm(TT + (e % 4) * 4, vb, e, njj)
            if e >= 1:
                if e == 8: A('s_nop 1')
                elif half: A('s_nop 0')
                t = TT + ((e - 1) % 4) * 4
                d = ACC + (e - 1) * 4
                if half:
                    A(f'v_mfma_f32_16x16x16_bf16 v[{d}:{d+3}], v[{t}:{t+1}], v[{P}:{P+1}], 0')
                else:
                    A(f'v_mfma_f32_16x16x32_bf16 v[{d}:{d+3}], v[{t}:{t+3}], v[{P}:{P+3}], v[{d}:{d+3}]')
    def publish(br, bar):
        xg(6, 15, 'v_add_f32')
        A(f'''
    s_mov_b32 exec_lo, 0x00ff00ff
    s_mov_b32 exec_hi, 0x00ff00ff''')
        for e in range(8):
            A(f'ds_write_b128 v11, v[{ACC+e*4}:{ACC+e*4+3}] offset:{LO + br*LOB + e*16}')
        A(f'''
    s_mov_b64 exec, 0xff
    v_lshlrev_b32 v15, 5, v0
    s_lshl_b32 s78, s3, 3
    v_add_u32 v15, s78, v15
    v_mov_b32 v8, v5
    v_mov_b32 v9, v6
    ds_write_b64 v15, v[8:9] offset:{LML + br*256}
    s_mov_b64 exec, -1
    v_lshrrev_b32 v15, 10, v13              ; h
    v_lshlrev_b32 v15, 5, v15
    s_waitcnt lgkmcnt(0)
    s_barrier        ; {bar}''')
        stamp('bar' + str(br))
        A(f'''
    ds_read_b128 v[{TT}:{TT+3}], v15 offset:{LML + br*256}
    ds_read_b128 v[{TT+4}:{TT+7}], v15 offset:{LML + br*256 + 16}''')
        for w in range(4):
            o = (LO + br * LOB + w * LOW)
            A(f'v_add_u32 v7, {o}, v12\nds_read2_b64 v[{ACC+w*4}:{ACC+w*4+3}], v7 offset0:0 offset1:32')
        m = [TT, TT + 2, TT + 4, TT + 6]; l = [TT + 1, TT + 3, TT + 5, TT + 7]
        R = S
        A(f'''
    s_lshl_b32 s78, s2, 13
    s_add_u32 s78, s78, {PART + br * 0x200000}
    v_mov_b32 v{R+1}, s72
    v_mov_b32 v{R+3}, s72
    v_mov_b32 v{R+5}, s72
    v_mov_b32 v{R+7}, s72
    v_mov_b32 v{U+1}, s72
    v_mov_b32 v{U+3}, s72
    s_waitcnt lgkmcnt(4)
    v_max3_f32 v{U}, v{m[0]}, v{m[1]}, v{m[2]}
    v_max_f32 v{U}, v{U}, v{m[3]}
    v_mul_f32 v7, s76, v{U}''')
        for w in range(4): A(f'v_fma_f32 v{m[w]}, v{m[w]}, s76, -v7')
        for w in range(4): A(f'v_exp_f32 v{m[w]}, v{m[w]}')
        A('s_waitcnt lgkmcnt(0)')
        A(f'v_mul_f32 v{U+2}, v{m[0]}, v{l[0]}')
        for k in range(4): A(f'v_mul_f32 v{R+2*k}, v{m[0]}, v{ACC+k}')
        for w in range(1, 4):
            A(f'v_fmac_f32 v{U+2}, v{m[w]}, v{l[w]}')
            for k in range(4): A(f'v_fmac_f32 v{R+2*k}, v{m[w]}, v{ACC+w*4+k}')
        A(f'''
    buffer_store_dwordx4 v[{R}:{R+3}], v13, s[64:67], s78 offen {sp}
    buffer_store_dwordx4 v[{R+4}:{R+7}], v13, s[64:67], s78 offen offset:512 {sp}
    s_lshl_b32 s78, s30, 13
    s_lshl_b32 s79, s31, 4
    s_add_u32 s78, s78, s79
    s_add_u32 s78, s78, {ML + br * 0x8000}
    s_mov_b32 exec_lo, 1
    s_mov_b32 exec_hi, 1
    buffer_store_dwordx4 v[{U}:{U+3}], v13, s[64:67], s78 offen {sp}
    s_mov_b64 exec, -1''')
    qfrag(0)
    A('s_waitcnt vmcnt(32) lgkmcnt(0)')
    qk(64, 1)
    qfrag(1)
    A('s_nop 4')
    roundscale(4)
    A(f'v_max3_f32 v5, v{S}, v{S+1}, v{S+2}\nv_max_f32 v5, v5, v{S+3}')
    xg(5, 15, 'v_max_f32')
    exps(4, True)
    pv(144, True)
    A('s_nop 4')
    publish(0, 'B3a')
    for k in range(32): A(f'v_mov_b32 v{ACC+k}, 0')
    A('v_mov_b32 v5, 0xff7fffff\nv_mov_b32 v6, 0\ns_mov_b32 s81, 0')
    stamp('loop')
    DW = opt.get('DW', D)
    DL = opt.get('DL', D)
    W0 = opt.get('W0', 0)
    W1 = opt.get('W1', min(DW, 8))
    W2 = opt.get('W2', min(W1 + 1, 8))
    def wol(dst, cg):
        L = []
        for j in range(8):
            off = (8 * (j & 3) + (j >> 2)) * 2048 + cg * 256
            r = dst + j * 4
            lo = off & 4095
            L.append((f's_mov_b32 s70, {off - lo}\n', f'buffer_load_dwordx4 v[{r}:{r+3}], v14, s[56:59], s70 offen offset:{lo} {pol}'))
        return L
    A('L_loop:')
    for b in range(2):
        kb, vb = b * 32, 16 + b * 32
        A('s_waitcnt vmcnt(24)')
        qk(kb, 2)
        A('s_nop 7')
        roundscale(8)
        A(f'v_max3_f32 v8, v{S}, v{S+1}, v5\nv_max3_f32 v9, v{S+2}, v{S+3}, v{S+4}\nv_max3_f32 v8, v8, v{S+5}, v{S+6}\nv_max3_f32 v8, v8, v9, v{S+7}')
        xg(8, 15, 'v_max_f32')
        A(f'''
    v_cmp_gt_f32 vcc, v8, v5
    s_cbranch_vccz L_nors{b}
    v_sub_f32 v9, v5, v8
    v_mul_f32 v9, s76, v9
    v_exp_f32 v9, v9
    v_mov_b32 v5, v8
    v_mul_f32 v6, v6, v9''')
        for k in range(32): A(f'v_mul_f32 v{ACC+k}, v{ACC+k}, v9')
        A(f'L_nors{b}:')
        exps(8, False)
        A(f's_cmp_eq_u32 s81, 3\ns_cbranch_scc1 L_s1alt{b}')
        steps(kl(kb, 's[36:39]', 's82', 2), DL)
        A(f's_add_u32 s82, s82, 0x8000\nL_s1ret{b}:')
        A(f's_waitcnt vmcnt(16)')
        pv(vb, False)
        A(f's_cmp_eq_u32 s81, 3\ns_cbranch_scc1 L_s2alt{b}')
        steps(vl(vb, 's[40:43]', 's83', 8), DL)
        A('s_add_u32 s83, s83, 0x8000')
        if b == 0: A('L_s2ret0:')
        else: A('s_add_u32 s81, s81, 1\ns_branch L_loop')
    WL0, WL1 = wol(16, 0), wol(48, 1)
    A('.set L_s1alt0, L_s1ret0')
    A('L_s2alt0:')
    steps(WL0[:W0], DL); A(f's_waitcnt vmcnt({8 + W0})\ns_branch L_s2ret0')
    A('L_s1alt1:')
    steps(WL0[W0:W1], DW); A(f's_waitcnt vmcnt({W1})\ns_branch L_s1ret1')
    A('L_s2alt1:')
    stamp('vlast')
    steps(WL0[W1:W2], DW)
    A('s_nop 4')
    publish(1, 'B3')
    stamp('pub')
    steps(WL0[W2:] + WL1, DW)
    A('s_waitcnt vmcnt(8)')
    for e in range(8): perm(80 + e * 4, 16, e, 4)
    A('s_waitcnt vmcnt(0)')
    stamp('wo')
    for e in range(8): perm(112 + e * 4, 48, e, 4)
    A(f'''
    v_lshrrev_b32 v8, 4, v0
    v_lshlrev_b32 v15, 4, v8                ; g*16
    v_and_b32 v9, 15, v0
    v_lshlrev_b32 v13, 6, v9
    v_add_u32 v13, v13, v15                 ; 64c + 16g
    s_lshl_b32 s78, s2, 13
    s_lshl_b32 s79, s3, 11
    s_add_u32 s78, s78, s79
    s_add_u32 s78, s78, {OP}
    v_mov_b32 v17, s72
    v_mov_b32 v19, s72
    v_mov_b32 v21, s72
    v_mov_b32 v23, s72
    s_barrier        ; B4
    ds_read_b128 v[24:27], v15 offset:{LOF}
    s_waitcnt lgkmcnt(0)''')
    stamp('b4')
    for x in range(16):
        A(f'v_mfma_f32_16x16x32_bf16 a[{x*4}:{x*4+3}], v[24:27], v[{80+x*4}:{83+x*4}], 0')
    A('s_mov_b64 exec, 0xffff\ns_nop 6')
    for gg in range(4):
        for k, x in enumerate([2 * gg, 2 * gg + 1, 8 + 2 * gg, 9 + 2 * gg]):
            A(f'v_accvgpr_read_b32 v{16+2*k}, a{x*4}')
        if gg < 3: A('s_lshl_b64 exec, exec, 16')
    A(f'''
    s_mov_b64 exec, -1
    buffer_store_dwordx4 v[16:19], v13, s[64:67], s78 offen {sp}
    buffer_store_dwordx4 v[20:23], v13, s[64:67], s78 offen offset:1024 {sp}''')
    stamp('end')
    A('s_branch L_fin')
    A('L_sync:')
    insync[0] = 1
    if opt.get('nosync'):
        A('s_waitcnt lgkmcnt(0)\ns_barrier\ns_barrier\ns_barrier\ns_barrier\ns_barrier\ns_branch L_fin')
    A('s_waitcnt lgkmcnt(0)\ns_load_dword s72, s[28:29], 0')
    srd(64, 28, 29, WSB if WSB else None, WSSZ)
    srd(68, 24, 25, None, 4096)
    A(f'''
    v_lshrrev_b32 v3, 5, v0
    v_lshlrev_b32 v3, 5, v3
    v_and_b32 v15, 3, v0
    v_lshl_add_u32 v3, v15, 3, v3
    v_bfe_u32 v15, v0, 2, 3
    v_add_u32 v3, v3, v15
    v_lshlrev_b32 v3, 3, v3
    v_lshlrev_b32 v4, 2, v0                 ; lane*4
    v_lshlrev_b32 v5, 15, v8
    v_lshl_add_u32 v5, v9, 9, v5
    v_add_u32 v5, 504, v5
    s_and_b32 s34, s33, 63
    s_lshr_b32 s35, s33, 6
    s_lshl_b32 s78, s32, 16
    s_lshl_b32 s79, s35, 15
    s_add_u32 s78, s78, s79
    s_lshl_b32 s79, s34, 9
    s_add_u32 s78, s78, s79
    s_add_u32 s78, s78, {QP}
    s_lshl_b32 s80, s30, 13
    s_add_u32 s80, s80, {QP}
    s_waitcnt lgkmcnt(0)
    s_add_u32 s72, s72, 1
    s_barrier        ; B1''')
    stamp('b1')
    for k in range(8): A(f'ds_read_b32 v{16+k}, v4 offset:{LQP + k*256}')
    A(f'''
    v_mov_b32 v25, s72
    s_waitcnt lgkmcnt(0)
    v_add_f32 v16, v16, v17
    v_add_f32 v18, v18, v19
    v_add_f32 v20, v20, v21
    v_add_f32 v22, v22, v23
    v_add_f32 v16, v16, v18
    v_add_f32 v20, v20, v22
    v_add_f32 v24, v16, v20
    {QST}
    s_mov_b32 s81, 0
L_qpoll:
    buffer_load_dwordx2 v[16:17], v5, s[64:67], s80 offen {lp}
    s_add_u32 s81, s81, 1
    s_cmp_gt_u32 s81, {SPIN}
    s_cbranch_scc1 L_qgo
    s_waitcnt vmcnt(0)
    v_cmp_ne_u32 vcc, s72, v17
    s_cbranch_vccnz L_qpoll
L_qgo:''')
    stamp('qpre')
    cstamp('cqpre')
    A('s_mov_b32 s81, 0')
    A('L_qgather:')
    for br in range(2):
        for half in range(2):
            for i in range(8):
                off = br * 0x10000 + half * 0x8000 + i * 1024
                r = 16 + (br * 16 + half * 8 + i) * 4
                if i % 4 == 0: A(f's_add_u32 s70, s80, {off}')
                A(f'buffer_load_dwordx4 v[{r}:{r+3}], v2, s[64:67], s70 offen offset:{(i%4)*1024} {opt.get("qlp", lp)}')
    A(f's_add_u32 s81, s81, 1\ns_waitcnt vmcnt(0)')
    stamp('qg1')
    for k in range(32):
        A(f'v_cmpx_eq_u32 vcc, s72, v{17+4*k}\nv_cmpx_eq_u32 vcc, s72, v{19+4*k}')
    A(f'''
    s_cmp_eq_u64 exec, -1
    s_mov_b64 exec, -1
    s_cbranch_scc1 L_qok
    s_cmp_gt_u32 s81, {SPIN}
    s_cbranch_scc0 L_qgather
L_qok:''')
    stamp('qgat')
    cstamp('cqgat')
    for br in range(2):
        for i in range(8):
            r = 16 + (br * 16 + i) * 4
            A(f'v_add_f32 v{r}, v{r}, v{r+32}\nv_add_f32 v{r+2}, v{r+2}, v{r+34}\nv_cvt_pk_bf16_f32 v{r}, v{r}, v{r+2}')
            A(f'ds_write_b32 v4, v{r} offset:{LQ + br*LQB + i*272}')
    A(f'''
    s_lshr_b32 s34, s33, 2
    s_and_b32 s35, s33, 3
    s_lshl_b32 s78, s32, 21
    s_lshr_b32 s79, s34, 3
    s_lshl_b32 s79, s79, 19
    s_add_u32 s78, s78, s79
    s_and_b32 s79, s34, 7
    s_lshl_b32 s79, s79, 10
    s_add_u32 s78, s78, s79
    s_lshl_b32 s79, s35, 8
    s_add_u32 s78, s78, s79
    s_add_u32 s78, s78, {PART}
    s_lshl_b32 s79, s32, 15
    s_lshl_b32 s80, s34, 10
    s_add_u32 s79, s79, s80
    s_add_u32 s79, s79, {ML}
    v_lshlrev_b32 v5, 13, v8
    v_lshl_add_u32 v5, v9, 4, v5            ; g*8192 + c*16
    v_and_b32 v6, 3, v0
    v_lshlrev_b32 v6, 6, v6
    v_lshrrev_b32 v15, 2, v0
    v_lshl_add_u32 v6, v15, 2, v6
    v_lshlrev_b32 v7, 6, v8
    s_waitcnt lgkmcnt(0)
    s_barrier        ; B2''')
    stamp('b2')
    A(f'''
    s_barrier        ; B3a
    s_cmp_eq_u32 s32, 0
    s_cbranch_scc1 L_pg
    s_barrier        ; B3 (B role)
L_pg:''')
    stamp('pgs')
    A('s_mov_b32 s81, 0')
    if opt.get('mlpre', 1):
        A(f'''
    s_cmp_eq_u32 s32, 0
    s_cbranch_scc0 L_pgather
L_mlpoll:
    buffer_load_dwordx4 v[12:15], v2, s[64:67], s79 offen {lp}
    s_add_u32 s81, s81, 1
    s_cmp_gt_u32 s81, {SPIN}
    s_cbranch_scc1 L_pgather
    s_waitcnt vmcnt(0)
    v_cmp_ne_u32 vcc, s72, v15
    s_cbranch_vccnz L_mlpoll''')
    A('L_pgather:')
    A(f'buffer_load_dwordx4 v[12:15], v2, s[64:67], s79 offen {lp}')
    for i in range(16):
        r = 16 + i * 4
        if i == 0: A(f'buffer_load_dwordx4 v[{r}:{r+3}], v5, s[64:67], s78 offen {lp}')
        else: A(f's_add_u32 s70, s78, {i * 4 * 8192}\nbuffer_load_dwordx4 v[{r}:{r+3}], v5, s[64:67], s70 offen {lp}')
    A(f's_add_u32 s81, s81, 1\ns_waitcnt vmcnt(0)')
    for k in range(17):
        A(f'v_cmpx_eq_u32 vcc, s72, v{13+4*k}\nv_cmpx_eq_u32 vcc, s72, v{15+4*k}')
    A(f'''
    s_cmp_eq_u64 exec, -1
    s_mov_b64 exec, -1
    s_cbranch_scc1 L_pok
    s_cmp_gt_u32 s81, {SPIN}
    s_cbranch_scc0 L_pgather
L_pok:''')
    stamp('pgok')
    cstamp('cpg')
    def allred(reg, tmp, op):
        for n in (1, 2, 4, 8):
            A(f's_nop 1\n{op}_dpp v{reg}, v{reg}, v{reg} row_ror:{n} row_mask:0xf bank_mask:0xf')
        xg(reg, tmp, op)
    A('s_nop 2\nv_mov_b32 v10, v12')
    allred(10, 11, 'v_max_f32')
    A(f'''
    v_sub_f32 v12, v12, v10
    v_mul_f32 v12, s76, v12
    v_exp_f32 v12, v12
    s_nop 0
    ds_write_b32 v6, v12 offset:{LW}
    v_mul_f32 v14, v14, v12
    s_waitcnt lgkmcnt(0)''')
    for k in range(4): A(f'ds_read_b128 v[{80+4*k}:{83+4*k}], v7 offset:{LW + 16*k}')
    allred(14, 11, 'v_add_f32')
    A('v_rcp_f32 v14, v14\ns_waitcnt lgkmcnt(0)')
    A('v_mul_f32 v10, v80, v16\nv_mul_f32 v11, v80, v18\nv_mul_f32 v12, v81, v20\nv_mul_f32 v13, v81, v22')
    for i in range(2, 16):
        a = 10 + 2 * (i & 1)
        A(f'v_fmac_f32 v{a}, v{80+i}, v{16+4*i}\nv_fmac_f32 v{a+1}, v{80+i}, v{18+4*i}')
    A('v_add_f32 v10, v10, v12\nv_add_f32 v11, v11, v13')
    xg(10, 12, 'v_add_f32'); xg(11, 12, 'v_add_f32')
    A(f'''
    v_mul_f32 v10, v10, v14
    v_mul_f32 v11, v11, v14
    v_cvt_pk_bf16_f32 v10, v10, v11
    s_mov_b64 exec, 0xffff
    ds_write_b32 v4, v10 offset:{LOF}
    s_mov_b64 exec, -1
    s_lshl_b32 s78, s32, 20                 ; br*128*8192
    s_lshl_b32 s79, s33, 6
    s_add_u32 s78, s78, s79
    s_add_u32 s78, s78, {OP}
    v_lshrrev_b32 v5, 2, v0
    v_lshlrev_b32 v5, 13, v5
    v_and_b32 v6, 3, v0
    v_lshl_add_u32 v5, v6, 4, v5            ; (l>>2)*8192 + (l&3)*16
    s_cmp_eq_u32 s32, 0
    s_cbranch_scc0 L_nob3
    s_barrier        ; B3 (A role)
L_nob3:
    s_waitcnt lgkmcnt(0)
    s_barrier        ; B4''')
    stamp('b4')
    A('s_mov_b32 s81, 0\nL_fgather:')
    for i in range(8):
        r = 16 + i * 4
        if i == 0: A(f'buffer_load_dwordx4 v[{r}:{r+3}], v5, s[64:67], s78 offen {lp}')
        else: A(f's_add_u32 s70, s78, {i * 16 * 8192}\nbuffer_load_dwordx4 v[{r}:{r+3}], v5, s[64:67], s70 offen {lp}')
    A(f's_add_u32 s81, s81, 1\ns_waitcnt vmcnt(0)')
    for k in range(8):
        A(f'v_cmpx_eq_u32 vcc, s72, v{17+4*k}\nv_cmpx_eq_u32 vcc, s72, v{19+4*k}')
    A(f'''
    s_cmp_eq_u64 exec, -1
    s_mov_b64 exec, -1
    s_cbranch_scc1 L_fok
    s_cmp_gt_u32 s81, {SPIN}
    s_cbranch_scc0 L_fgather
L_fok:
    s_nop 2''')
    stamp('fok')
    cstamp('cf')
    for st in (16, 8, 4):
        for r in range(16, 16 + st, 4):
            A(f'v_add_f32 v{r}, v{r}, v{r+st}\nv_add_f32 v{r+2}, v{r+2}, v{r+st+2}')
    for n in (4, 8):
        A(f's_nop 1\nv_add_f32_dpp v16, v16, v16 row_ror:{n} row_mask:0xf bank_mask:0xf\nv_add_f32_dpp v18, v18, v18 row_ror:{n} row_mask:0xf bank_mask:0xf')
    xg(16, 12, 'v_add_f32'); xg(18, 12, 'v_add_f32')
    A(f'''
    v_cvt_pk_bf16_f32 v16, v16, v18
    s_lshl_b32 s78, s2, 4
    s_mov_b64 exec, 0xf
    buffer_store_dword v16, v4, s[68:71], s78 offen
    s_cmp_eq_u32 s2, 0
    s_cbranch_scc0 L_noep
    s_mov_b64 exec, 1
    v_mov_b32 v17, s72
    global_store_dword v4, v17, s[28:29] sc1
L_noep:
    s_mov_b64 exec, -1''')
    stamp('end')
    if opt.get('hold'):
        A(f'''
L_hold:
    s_memrealtime s[86:87]
    s_waitcnt lgkmcnt(0)
    s_sub_u32 s86, s86, s84
    s_cmp_lt_u32 s86, {opt['hold'] * 100}
    s_cbranch_scc1 L_hold''')
    A('L_fin:')
    if stamps:
        A('s_waitcnt vmcnt(0) lgkmcnt(0)')
        for k in range(16): A(f'v_mov_b32 v{16+k}, s{84+k}')
        A(f'''
    s_mul_i32 s78, s2, 5
    s_add_u32 s78, s78, s3
    s_lshl_b32 s78, s78, 6
    s_add_u32 s78, s78, {STAMP}
    v_mov_b32 v1, s78
    s_mov_b64 exec, 1''')
        for k in range(4): A(f'global_store_dwordx4 v1, v[{16+4*k}:{19+4*k}], s[28:29] offset:{16*k}')
    A('''
L_end:
    s_endpgm
.section .rodata,"a"
.p2align 6
''')
    A(kdesc(name, 256, 102, 160).replace('.end_amdhsa', '  .amdhsa_float_denorm_mode_32 3\n.end_amdhsa'))
    t = A.text()
    if NOST:
        t = '\n'.join(('s_nop 0' if 'buffer_store' in l else l) for l in t.split('\n'))
    open(fn, 'w').write(t)

if __name__ == '__main__':
    import json
    for spec in sys.argv[1:]:
        fn, _, o = spec.partition(':')
        opt = {}
        for kv in filter(None, o.split(',')):
            k, _, v = kv.partition('=')
            try: v = int(v, 0)
            except ValueError: v = v.replace('+', ' ')
            opt[k] = v
        gen(fn, stamps=bool(opt.get('st')), pol=opt.get('pol', 'nt'), opt=opt)
```

```python
import sys
from asmlib import *

QP   = 0x1000
PART = 0x40000
ML   = 0x480000
OP   = 0x500000
WSSZ = 0x700000
STAMP = 0x10000000
LQP = 0
LQ  = 2048
LQB = 8 * 272
LO  = 6656
LOW = 8 * 528
LOB = 4 * LOW
LML = LO + 2 * LOB
LOF = LML + 512
LW  = LOF + 64
LDSSZ = LW + 256
SPIN = 400000

def gen(fn, stamps=False, pol='nt', opt=None):
    opt = opt or {}
    WSB = opt.get('wsb', 0)
    sp = opt.get('sp', 'sc1')
    NOST = opt.get('nost')
    lp = opt.get('lp', 'sc1')
    A = Asm()
    name = KN + '_kernel'
    A(open('cdna_kernels/' + KN + '.s.ref').read().split('; Override launch')[0].rstrip('\n'))
    A(header([(None, 256, 320, LDSSZ)]))
    A(kstart(name))
    DIAG1 = 's_waitcnt vmcnt(0)\ns_memrealtime s[96:97]\n' if opt.get('diag') else ''
    insync = [0]
    PRE = ''
    if opt.get('pre'):
        n = opt['pre']
        PRE = f'''
    s_lshr_b32 s36, s2, 6
    s_lshl_b32 s36, s36, 24
    s_and_b32 s37, s2, 63
    s_lshl_b32 s37, s37, 2
    s_add_u32 s37, s37, s3
    s_mul_i32 s37, s37, {60*1024}
    s_add_u32 s36, s36, s37
    s_add_u32 s40, s6, s36
    s_addc_u32 s41, s7, 0
    s_mov_b32 s42, 0x10000
    s_mov_b32 s43, 0x20000
    s_add_u32 s44, s8, s36
    s_addc_u32 s45, s9, 0
    s_mov_b32 s46, 0x10000
    s_mov_b32 s47, 0x20000
    s_mov_b32 s70, 0
L_pre:
    s_waitcnt vmcnt(14)
    buffer_load_dwordx4 v[16:19], v2, s[40:43], s70 offen {pol}
    buffer_load_dwordx4 v[20:23], v2, s[44:47], s70 offen {pol}
    s_add_u32 s70, s70, 1024
    s_cmp_lt_u32 s70, {n*1024}
    s_cbranch_scc1 L_pre
    s_waitcnt vmcnt(0)
'''
    QST = {'st': f'buffer_store_dwordx2 v[24:25], v3, s[64:67], s78 offen {sp}',
           'sw': 'buffer_atomic_swap_x2 v[24:25], v3, s[64:67], s78 offen sc1',
           'swr': 'buffer_atomic_swap_x2 v[24:25], v3, s[64:67], s78 offen sc0 sc1',
           'sw0': 'buffer_atomic_swap_x2 v[24:25], v3, s[64:67], s78 offen',
           'stwb': 'buffer_store_dwordx2 v[24:25], v3, s[64:67], s78 offen\ns_waitcnt vmcnt(0)\nbuffer_wbl2 sc1',
           }[opt.get('qst', 'st')]
    CS = opt.get('cs', 'start.b1.b2.loop.vlast.pub.b4.end').split('.')
    SS = opt.get('ss', 'start.b1.qpre.qgat.pgs.pgok.b4.end').split('.')
    def stamp(nm):
        L = SS if insync[0] else CS
        if stamps and nm in L:
            k = L.index(nm)
            A(f's_memrealtime s[{84 + 2 * k}:{85 + 2 * k}]')
    def cstamp(nm):
        L = SS if insync[0] else CS
        if stamps and nm in L:
            k = L.index(nm)
            A(f's_waitcnt lgkmcnt(0)\ns_mul_i32 s{84+2*k}, s81, 100\ns_add_u32 s{84+2*k}, s{84+2*k}, s84\ns_addc_u32 s{85+2*k}, s85, 0')
    def srd(d, lo, hi, off, size):
        if off is None:
            A(f's_mov_b32 s{d}, s{lo}\ns_mov_b32 s{d+1}, s{hi}')
        else:
            A(f's_add_u32 s{d}, s{lo}, {off}\ns_addc_u32 s{d+1}, s{hi}, 0')
        A(f's_mov_b32 s{d+2}, {size}\ns_mov_b32 s{d+3}, 0x20000')
    A(f'''
    s_cmp_ge_u32 s2, 256
    s_cbranch_scc1 L_end
    s_load_dwordx16 s[4:19], s[0:1], 0
    s_load_dwordx8 s[20:27], s[0:1], 64
    s_load_dwordx2 s[28:29], s[0:1], 96     ; ws
''')
    stamp('start')
    if opt.get('hold'): A('s_memrealtime s[84:85]')
    A(f'''
    v_lshrrev_b32 v1, 6, v0
    v_and_b32 v0, 63, v0
    v_readfirstlane_b32 s3, v1
    s_lshr_b32 s30, s2, 6
    s_and_b32 s31, s2, 63                   ; chunk
    s_lshr_b32 s32, s2, 7
    s_and_b32 s33, s2, 127
    v_lshlrev_b32 v2, 4, v0                 ; lane*16
    v_lshrrev_b32 v8, 4, v0                 ; g
    v_and_b32 v9, 15, v0                    ; n
    s_mov_b32 s73, 0x05040100
    s_mov_b32 s74, 0x07060302
    s_mov_b32 s75, 0x3db504f3               ; 128^-0.5
    s_mov_b32 s76, 0x3fb8aa3b               ; log2(e)
    s_mov_b32 s77, 0xffff0000
    s_cmp_eq_u32 s3, 4
    s_cbranch_scc1 L_sync
''')
    A(f'''
    ; vWQ (v3) = (l>>3)*8*8192 + (l&7)*16
    v_lshrrev_b32 v3, 3, v0
    v_lshlrev_b32 v3, 16, v3
    v_and_b32 v15, 7, v0
    v_lshl_add_u32 v3, v15, 4, v3
    ; vX (v4) = (2g + (n&1))*16
    v_and_b32 v15, 1, v0
    v_lshl_add_u32 v4, v8, 1, v15
    v_lshlrev_b32 v4, 4, v4
    ; vK (v1) = (4*(n&3) + (n>>2))*256 + g*16
    v_and_b32 v15, 3, v9
    v_lshrrev_b32 v1, 2, v9
    v_lshl_add_u32 v1, v15, 2, v1
    v_lshlrev_b32 v1, 8, v1
    v_lshl_add_u32 v1, v8, 4, v1
    {'v_mov_b32 v1, v2' if opt.get('klin') else ''}
    s_and_b32 s34, s33, 63
    s_lshr_b32 s35, s33, 6
    s_lshl_b32 s78, s34, 7                  ; cg*128 B
    s_lshl_b32 s79, s35, 22
    s_add_u32 s78, s78, s79
    s_lshl_b32 s79, s3, 20
    s_add_u32 s78, s78, s79
    s_lshl_b32 s80, s35, 10                 ; x: half*1024
    s_lshl_b32 s79, s3, 8
    s_add_u32 s80, s80, s79                 ; + wave*256
    s_waitcnt lgkmcnt(0)
    s_cmp_eq_u32 s32, 0
    s_cselect_b32 s52, s10, s20
    s_cselect_b32 s53, s11, s21
    s_cselect_b32 s60, s4, s14
    s_cselect_b32 s61, s5, s15
    s_cselect_b32 s56, s12, s22
    s_cselect_b32 s57, s13, s23
    s_add_u32 s52, s52, s78
    s_addc_u32 s53, s53, 0
    s_sub_u32 s54, 0x800000, s78
    s_mov_b32 s55, 0x20000
    s_mov_b32 s62, 2048
    s_mov_b32 s63, 0x20000
{PRE}
    buffer_load_dwordx4 v[64:67], v4, s[60:63], s80 offen
    buffer_load_dwordx4 v[68:71], v4, s[60:63], s80 offen offset:128
''')
    WQ = 80
    for st in range(2):
        for j in range(8):
            off = (st * 64 + j) * 8192
            r = WQ + (st * 8 + j) * 4
            if off == 0:
                A(f'buffer_load_dwordx4 v[{r}:{r+3}], v3, s[52:55], 0 offen {pol}')
            else:
                A(f's_mov_b32 s70, {off}\nbuffer_load_dwordx4 v[{r}:{r+3}], v3, s[52:55], s70 offen {pol}')
    A(f'''
    s_load_dword s72, s[28:29], 0           ; epoch
    s_lshl_b32 s78, s30, 24
    s_lshl_b32 s79, s31, 18
    s_add_u32 s79, s79, s78                 ; B offset
    s_lshl_b32 s80, s31, 14
    s_add_u32 s80, s80, s78
    s_add_u32 s80, s80, {(65536 - 4096) * 256}
    s_lshl_b32 s81, s3, 12
    s_add_u32 s80, s80, s81
''')
    srd(36, 16, 17, 's79', 0x40000); srd(40, 18, 19, 's79', 0x40000)
    srd(44, 6, 7, 's80', 0x1000); srd(48, 8, 9, 's80', 0x1000)
    srd(64, 28, 29, WSB if WSB else None, WSSZ)
    A(f'''
    s_lshl_b32 s78, s33, 16
    s_add_u32 s56, s56, s78
    s_addc_u32 s57, s57, 0
    s_mov_b32 s58, 0x10000
    s_mov_b32 s59, 0x20000
    s_lshl_b32 s82, s3, 13
    s_mov_b32 s83, s82                      ; (V)
    v_and_b32 v15, 7, v9
    v_mul_u32_u24 v10, 272, v15
    v_lshl_add_u32 v10, v8, 4, v10
    v_mul_u32_u24 v11, 528, v15
    v_lshl_add_u32 v11, v8, 7, v11
    s_mul_i32 s78, s3, {LOW}
    v_add_u32 v11, s78, v11
    v_lshrrev_b32 v15, 5, v0
    s_lshl_b32 s78, s3, 1
    v_add_u32 v15, s78, v15                 ; h
    v_mul_u32_u24 v12, 528, v15
    v_and_b32 v7, 31, v0
    v_lshl_add_u32 v12, v7, 3, v12
    v_lshlrev_b32 v13, 10, v15
    v_lshl_add_u32 v13, v7, 4, v13
    v_lshlrev_b32 v14, 12, v8
    v_lshl_add_u32 v14, v9, 4, v14
    s_lshl_b32 s78, s3, 9
    v_add_u32 v14, s78, v14
''')
    D = opt.get('D', 6)
    KST = 1024 if opt.get('klin') else 64
    def pace(d=None):
        A(f's_waitcnt vmcnt({(d or D) - 1})')
    def kl(dst, srdn, soff, n16):
        L = []
        for t in range(n16):
            so = soff if t == 0 else 's70'
            for m in range(4):
                r = dst + t * 16 + m * 4
                pre = f's_add_u32 s70, {soff}, 4096\n' if (t == 1 and m == 0) else ''
                L.append((pre, f'buffer_load_dwordx4 a[{r}:{r+3}], v1, {srdn}, {so} offen offset:{m*KST} {pol}'))
        return L
    def vl(dst, srdn, soff, n):
        L = []
        for j in range(n):
            so = soff if j < 4 else 's70'
            r = dst + j * 4
            pre = f's_add_u32 s70, {soff}, 4096\n' if j == 4 else ''
            L.append((pre, f'buffer_load_dwordx4 v[{r}:{r+3}], v2, {srdn}, {so} offen offset:{(j%4)*1024} {pol}'))
        return L
    def steps(L, d=None):
        for pre, ld in L:
            if pre: A(pre.rstrip())
            pace(d)
            A(ld)
    def perm(dst, src, e, njj):
        dd, hi = e >> 1, e & 1
        for jj in range(njj):
            A(f'v_perm_b32 v{dst+jj}, v{src+(2*jj+1)*4+dd}, v{src+2*jj*4+dd}, s{74 if hi else 73}')
    def qset(st):
        T = 48
        src = WQ + st * 32
        xr = 64 + st * 4
        for e in range(9):
            if e < 8: perm(T + (e % 4) * 4, src, e, 4)
            if e >= 1:
                if e == 8: A('s_nop 1')
                t = T + ((e - 1) % 4) * 4
                d = 32 + (e - 1) * 4
                c = '0' if st == 0 else f'a[{d}:{d+3}]'
                A(f'v_mfma_f32_16x16x32_bf16 a[{d}:{d+3}], v[{t}:{t+3}], v[{xr}:{xr+3}], {c}')
    A('s_waitcnt vmcnt(8)')
    qset(0)
    LA = kl(64, 's[44:47]', '0', 1) + vl(144, 's[48:51]', '0', 4)
    steps(LA[:D])
    A(f's_waitcnt vmcnt({D})')
    qset(1)
    A(f'''
    v_lshlrev_b32 v15, 7, v8
    s_lshl_b32 s78, s3, 9
    v_add_u32 v15, s78, v15
    s_mov_b32 exec_lo, 0x00010001
    s_mov_b32 exec_hi, 0x00020002
    s_nop 4
''')
    for e in range(8):
        A(f'ds_write_b128 v15, a[{32+e*4}:{35+e*4}] offset:{LQP + e*16}')
    A('s_mov_b64 exec, -1\ns_waitcnt lgkmcnt(0)\ns_add_u32 s72, s72, 1\ns_barrier        ; B1')
    stamp('b1')
    steps(LA[D:])
    steps(kl(0, 's[36:39]', 's82', 2))
    steps(vl(16, 's[40:43]', 's83', 8))
    A('s_add_u32 s82, s82, 0x8000\ns_add_u32 s83, s83, 0x8000')
    steps(kl(32, 's[36:39]', 's82', 2))
    steps(vl(48, 's[40:43]', 's83', 8))
    A('s_add_u32 s82, s82, 0x8000\ns_add_u32 s83, s83, 0x8000')
    stamp('preb2')
    A('s_barrier        ; B2')
    stamp('b2')
    ACC, TT, S, U, P = 80, 112, 128, 136, 140
    Q = 80
    def qfrag(br):
        for m in range(4):
            A(f'ds_read_b128 a[{Q+m*4}:{Q+m*4+3}], v10 offset:{LQ + br*LQB + m*64}')
    def qk(kb, nt):
        for m in range(4):
            for t in range(nt):
                c = '0' if m == 0 else f'v[{S+t*4}:{S+t*4+3}]'
                A(f'v_mfma_f32_16x16x32_bf16 v[{S+t*4}:{S+t*4+3}], a[{kb+t*16+m*4}:{kb+t*16+m*4+3}], a[{Q+m*4}:{Q+m*4+3}], {c}')
    def roundscale(nv):
        for k in range(nv // 2): A(f'v_cvt_pk_bf16_f32 v{U+k}, v{S+2*k}, v{S+2*k+1}')
        for k in range(nv // 2):
            A(f'v_lshlrev_b32 v{S+2*k}, 16, v{U+k}\nv_and_b32 v{S+2*k+1}, s77, v{U+k}')
        for k in range(nv): A(f'v_mul_f32 v{S+k}, s75, v{S+k}')
        for k in range(nv // 2): A(f'v_cvt_pk_bf16_f32 v{U+k}, v{S+2*k}, v{S+2*k+1}')
        for k in range(nv // 2):
            A(f'v_lshlrev_b32 v{S+2*k}, 16, v{U+k}\nv_and_b32 v{S+2*k+1}, s77, v{U+k}')
    def xg(reg, tmp, op):
        A(f'v_mov_b32 v{tmp}, v{reg}\ns_nop 1\nv_permlane16_swap_b32 v{reg}, v{tmp}\ns_nop 1\n{op} v{reg}, v{reg}, v{tmp}')
        A(f'v_mov_b32 v{tmp}, v{reg}\ns_nop 1\nv_permlane32_swap_b32 v{reg}, v{tmp}\ns_nop 1\n{op} v{reg}, v{reg}, v{tmp}')
    def exps(nv, first):
        A('v_mul_f32 v7, s76, v5')
        for k in range(nv): A(f'v_fma_f32 v{S+k}, v{S+k}, s76, -v7')
        for k in range(nv): A(f'v_exp_f32 v{S+k}, v{S+k}')
        A('s_nop 0')
        for k in range(nv // 2): A(f'v_cvt_pk_bf16_f32 v{P+k}, v{S+2*k}, v{S+2*k+1}')
        if first:
            A(f'v_add_f32 v6, v{S}, v{S+1}')
            for k in range(2, nv): A(f'v_add_f32 v6, v6, v{S+k}')
        else:
            for k in range(0, nv, 2): A(f'v_add_f32 v{S+k}, v{S+k}, v{S+k+1}')
            for k in range(0, nv, 4): A(f'v_add_f32 v{S+k}, v{S+k}, v{S+k+2}')
            A(f'v_add_f32 v{S}, v{S}, v{S+4}\nv_add_f32 v6, v6, v{S}')
    def pv(vb, half):
        njj = 2 if half else 4
        for e in range(9):
            if e < 8: perm(TT + (e % 4) * 4, vb, e, njj)
            if e >= 1:
                if e == 8: A('s_nop 1')
                elif half: A('s_nop 0')
                t = TT + ((e - 1) % 4) * 4
                d = ACC + (e - 1) * 4
                if half:
                    A(f'v_mfma_f32_16x16x16_bf16 v[{d}:{d+3}], v[{t}:{t+1}], v[{P}:{P+1}], 0')
                else:
                    A(f'v_mfma_f32_16x16x32_bf16 v[{d}:{d+3}], v[{t}:{t+3}], v[{P}:{P+3}], v[{d}:{d+3}]')
    def publish(br, bar):
        xg(6, 15, 'v_add_f32')
        A(f'''
    s_mov_b32 exec_lo, 0x00ff00ff
    s_mov_b32 exec_hi, 0x00ff00ff''')
        for e in range(8):
            A(f'ds_write_b128 v11, v[{ACC+e*4}:{ACC+e*4+3}] offset:{LO + br*LOB + e*16}')
        A(f'''
    s_mov_b64 exec, 0xff
    v_lshlrev_b32 v15, 5, v0
    s_lshl_b32 s78, s3, 3
    v_add_u32 v15, s78, v15
    v_mov_b32 v8, v5
    v_mov_b32 v9, v6
    ds_write_b64 v15, v[8:9] offset:{LML + br*256}
    s_mov_b64 exec, -1
    v_lshrrev_b32 v15, 10, v13              ; h
    v_lshlrev_b32 v15, 5, v15
    s_waitcnt lgkmcnt(0)
    s_barrier        ; {bar}''')
        stamp('bar' + str(br))
        A(f'''
    ds_read_b128 v[{TT}:{TT+3}], v15 offset:{LML + br*256}
    ds_read_b128 v[{TT+4}:{TT+7}], v15 offset:{LML + br*256 + 16}''')
        for w in range(4):
            o = (LO + br * LOB + w * LOW)
            A(f'v_add_u32 v7, {o}, v12\nds_read2_b64 v[{ACC+w*4}:{ACC+w*4+3}], v7 offset0:0 offset1:32')
        m = [TT, TT + 2, TT + 4, TT + 6]; l = [TT + 1, TT + 3, TT + 5, TT + 7]
        R = S
        A(f'''
    s_lshl_b32 s78, s2, 13
    s_add_u32 s78, s78, {PART + br * 0x200000}
    v_mov_b32 v{R+1}, s72
    v_mov_b32 v{R+3}, s72
    v_mov_b32 v{R+5}, s72
    v_mov_b32 v{R+7}, s72
    v_mov_b32 v{U+1}, s72
    v_mov_b32 v{U+3}, s72
    s_waitcnt lgkmcnt(4)
    v_max3_f32 v{U}, v{m[0]}, v{m[1]}, v{m[2]}
    v_max_f32 v{U}, v{U}, v{m[3]}
    v_mul_f32 v7, s76, v{U}''')
        for w in range(4): A(f'v_fma_f32 v{m[w]}, v{m[w]}, s76, -v7')
        for w in range(4): A(f'v_exp_f32 v{m[w]}, v{m[w]}')
        A('s_waitcnt lgkmcnt(0)')
        A(f'v_mul_f32 v{U+2}, v{m[0]}, v{l[0]}')
        for k in range(4): A(f'v_mul_f32 v{R+2*k}, v{m[0]}, v{ACC+k}')
        for w in range(1, 4):
            A(f'v_fmac_f32 v{U+2}, v{m[w]}, v{l[w]}')
            for k in range(4): A(f'v_fmac_f32 v{R+2*k}, v{m[w]}, v{ACC+w*4+k}')
        A(f'''
    buffer_store_dwordx4 v[{R}:{R+3}], v13, s[64:67], s78 offen {sp}
    buffer_store_dwordx4 v[{R+4}:{R+7}], v13, s[64:67], s78 offen offset:512 {sp}
    s_lshl_b32 s78, s30, 13
    s_lshl_b32 s79, s31, 4
    s_add_u32 s78, s78, s79
    s_add_u32 s78, s78, {ML + br * 0x8000}
    s_mov_b32 exec_lo, 1
    s_mov_b32 exec_hi, 1
    buffer_store_dwordx4 v[{U}:{U+3}], v13, s[64:67], s78 offen {sp}
    s_mov_b64 exec, -1''')
    qfrag(0)
    A('s_waitcnt vmcnt(32) lgkmcnt(0)')
    qk(64, 1)
    qfrag(1)
    A('s_nop 4')
    roundscale(4)
    A(f'v_max3_f32 v5, v{S}, v{S+1}, v{S+2}\nv_max_f32 v5, v5, v{S+3}')
    xg(5, 15, 'v_max_f32')
    exps(4, True)
    pv(144, True)
    A('s_nop 4')
    publish(0, 'B3a')
    for k in range(32): A(f'v_mov_b32 v{ACC+k}, 0')
    A('v_mov_b32 v5, 0xff7fffff\nv_mov_b32 v6, 0\ns_mov_b32 s81, 0')
    stamp('loop')
    DW = opt.get('DW', D)
    DL = opt.get('DL', D)
    W0 = opt.get('W0', 0)
    W1 = opt.get('W1', min(DW, 8))
    W2 = opt.get('W2', min(W1 + 1, 8))
    def wol(dst, cg):
        L = []
        for j in range(8):
            off = (8 * (j & 3) + (j >> 2)) * 2048 + cg * 256
            r = dst + j * 4
            lo = off & 4095
            L.append((f's_mov_b32 s70, {off - lo}\n', f'buffer_load_dwordx4 v[{r}:{r+3}], v14, s[56:59], s70 offen offset:{lo} {pol}'))
        return L
    A('L_loop:')
    for b in range(2):
        kb, vb = b * 32, 16 + b * 32
        A('s_waitcnt vmcnt(24)')
        qk(kb, 2)
        A('s_nop 7')
        roundscale(8)
        A(f'v_max3_f32 v8, v{S}, v{S+1}, v5\nv_max3_f32 v9, v{S+2}, v{S+3}, v{S+4}\nv_max3_f32 v8, v8, v{S+5}, v{S+6}\nv_max3_f32 v8, v8, v9, v{S+7}')
        xg(8, 15, 'v_max_f32')
        A(f'''
    v_cmp_gt_f32 vcc, v8, v5
    s_cbranch_vccz L_nors{b}
    v_sub_f32 v9, v5, v8
    v_mul_f32 v9, s76, v9
    v_exp_f32 v9, v9
    v_mov_b32 v5, v8
    v_mul_f32 v6, v6, v9''')
        for k in range(32): A(f'v_mul_f32 v{ACC+k}, v{ACC+k}, v9')
        A(f'L_nors{b}:')
        exps(8, False)
        A(f's_cmp_eq_u32 s81, 3\ns_cbranch_scc1 L_s1alt{b}')
        steps(kl(kb, 's[36:39]', 's82', 2), DL)
        A(f's_add_u32 s82, s82, 0x8000\nL_s1ret{b}:')
        A(f's_waitcnt vmcnt(16)')
        pv(vb, False)
        A(f's_cmp_eq_u32 s81, 3\ns_cbranch_scc1 L_s2alt{b}')
        steps(vl(vb, 's[40:43]', 's83', 8), DL)
        A('s_add_u32 s83, s83, 0x8000')
        if b == 0: A('L_s2ret0:')
        else: A('s_add_u32 s81, s81, 1\ns_branch L_loop')
    WL0, WL1 = wol(16, 0), wol(48, 1)
    A('.set L_s1alt0, L_s1ret0')
    A('L_s2alt0:')
    steps(WL0[:W0], DL); A(f's_waitcnt vmcnt({8 + W0})\ns_branch L_s2ret0')
    A('L_s1alt1:')
    steps(WL0[W0:W1], DW); A(f's_waitcnt vmcnt({W1})\ns_branch L_s1ret1')
    A('L_s2alt1:')
    stamp('vlast')
    steps(WL0[W1:W2], DW)
    A('s_nop 4')
    publish(1, 'B3')
    stamp('pub')
    steps(WL0[W2:] + WL1, DW)
    A('s_waitcnt vmcnt(8)')
    for e in range(8): perm(80 + e * 4, 16, e, 4)
    A('s_waitcnt vmcnt(0)')
    stamp('wo')
    for e in range(8): perm(112 + e * 4, 48, e, 4)
    A(f'''
    v_lshrrev_b32 v8, 4, v0
    v_lshlrev_b32 v15, 4, v8                ; g*16
    v_and_b32 v9, 15, v0
    v_lshlrev_b32 v13, 6, v9
    v_add_u32 v13, v13, v15                 ; 64c + 16g
    s_lshl_b32 s78, s2, 13
    s_lshl_b32 s79, s3, 11
    s_add_u32 s78, s78, s79
    s_add_u32 s78, s78, {OP}
    v_mov_b32 v17, s72
    v_mov_b32 v19, s72
    v_mov_b32 v21, s72
    v_mov_b32 v23, s72
    s_barrier        ; B4
    ds_read_b128 v[24:27], v15 offset:{LOF}
    s_waitcnt lgkmcnt(0)''')
    stamp('b4')
    for x in range(16):
        A(f'v_mfma_f32_16x16x32_bf16 a[{x*4}:{x*4+3}], v[24:27], v[{80+x*4}:{83+x*4}], 0')
    A('s_mov_b64 exec, 0xffff\ns_nop 6')
    for gg in range(4):
        for k, x in enumerate([2 * gg, 2 * gg + 1, 8 + 2 * gg, 9 + 2 * gg]):
            A(f'v_accvgpr_read_b32 v{16+2*k}, a{x*4}')
        if gg < 3: A('s_lshl_b64 exec, exec, 16')
    A(f'''
    s_mov_b64 exec, -1
    buffer_store_dwordx4 v[16:19], v13, s[64:67], s78 offen {sp}
    buffer_store_dwordx4 v[20:23], v13, s[64:67], s78 offen offset:1024 {sp}''')
    stamp('end')
    A('s_branch L_fin')
    A('L_sync:')
    insync[0] = 1
    if opt.get('nosync'):
        A('s_waitcnt lgkmcnt(0)\ns_barrier\ns_barrier\ns_barrier\ns_barrier\ns_barrier\ns_branch L_fin')
    A('s_waitcnt lgkmcnt(0)\ns_load_dword s72, s[28:29], 0')
    srd(64, 28, 29, WSB if WSB else None, WSSZ)
    srd(68, 24, 25, None, 4096)
    A(f'''
    v_lshrrev_b32 v3, 5, v0
    v_lshlrev_b32 v3, 5, v3
    v_and_b32 v15, 3, v0
    v_lshl_add_u32 v3, v15, 3, v3
    v_bfe_u32 v15, v0, 2, 3
    v_add_u32 v3, v3, v15
    v_lshlrev_b32 v3, 3, v3
    v_lshlrev_b32 v4, 2, v0                 ; lane*4
    v_lshlrev_b32 v5, 15, v8
    v_lshl_add_u32 v5, v9, 9, v5
    v_add_u32 v5, 504, v5
    s_and_b32 s34, s33, 63
    s_lshr_b32 s35, s33, 6
    s_lshl_b32 s78, s32, 16
    s_lshl_b32 s79, s35, 15
    s_add_u32 s78, s78, s79
    s_lshl_b32 s79, s34, 9
    s_add_u32 s78, s78, s79
    s_add_u32 s78, s78, {QP}
    s_lshl_b32 s80, s30, 13
    s_add_u32 s80, s80, {QP}
    s_waitcnt lgkmcnt(0)
    s_add_u32 s72, s72, 1
    s_barrier        ; B1''')
    stamp('b1')
    for k in range(8): A(f'ds_read_b32 v{16+k}, v4 offset:{LQP + k*256}')
    A(f'''
    v_mov_b32 v25, s72
    s_waitcnt lgkmcnt(0)
    v_add_f32 v16, v16, v17
    v_add_f32 v18, v18, v19
    v_add_f32 v20, v20, v21
    v_add_f32 v22, v22, v23
    v_add_f32 v16, v16, v18
    v_add_f32 v20, v20, v22
    v_add_f32 v24, v16, v20
    {QST}
    s_mov_b32 s81, 0
L_qpoll:
    buffer_load_dwordx2 v[16:17], v5, s[64:67], s80 offen {lp}
    s_add_u32 s81, s81, 1
    s_cmp_gt_u32 s81, {SPIN}
    s_cbranch_scc1 L_qgo
    s_waitcnt vmcnt(0)
    v_cmp_ne_u32 vcc, s72, v17
    s_cbranch_vccnz L_qpoll
L_qgo:''')
    stamp('qpre')
    cstamp('cqpre')
    A('s_mov_b32 s81, 0')
    A('L_qgather:')
    for br in range(2):
        for half in range(2):
            for i in range(8):
                off = br * 0x10000 + half * 0x8000 + i * 1024
                r = 16 + (br * 16 + half * 8 + i) * 4
                if i % 4 == 0: A(f's_add_u32 s70, s80, {off}')
                A(f'buffer_load_dwordx4 v[{r}:{r+3}], v2, s[64:67], s70 offen offset:{(i%4)*1024} {opt.get("qlp", lp)}')
    A(f's_add_u32 s81, s81, 1\ns_waitcnt vmcnt(0)')
    stamp('qg1')
    for k in range(32):
        A(f'v_cmpx_eq_u32 vcc, s72, v{17+4*k}\nv_cmpx_eq_u32 vcc, s72, v{19+4*k}')
    A(f'''
    s_cmp_eq_u64 exec, -1
    s_mov_b64 exec, -1
    s_cbranch_scc1 L_qok
    s_cmp_gt_u32 s81, {SPIN}
    s_cbranch_scc0 L_qgather
L_qok:''')
    stamp('qgat')
    cstamp('cqgat')
    for br in range(2):
        for i in range(8):
            r = 16 + (br * 16 + i) * 4
            A(f'v_add_f32 v{r}, v{r}, v{r+32}\nv_add_f32 v{r+2}, v{r+2}, v{r+34}\nv_cvt_pk_bf16_f32 v{r}, v{r}, v{r+2}')
            A(f'ds_write_b32 v4, v{r} offset:{LQ + br*LQB + i*272}')
    A(f'''
    s_lshr_b32 s34, s33, 2
    s_and_b32 s35, s33, 3
    s_lshl_b32 s78, s32, 21
    s_lshr_b32 s79, s34, 3
    s_lshl_b32 s79, s79, 19
    s_add_u32 s78, s78, s79
    s_and_b32 s79, s34, 7
    s_lshl_b32 s79, s79, 10
    s_add_u32 s78, s78, s79
    s_lshl_b32 s79, s35, 8
    s_add_u32 s78, s78, s79
    s_add_u32 s78, s78, {PART}
    s_lshl_b32 s79, s32, 15
    s_lshl_b32 s80, s34, 10
    s_add_u32 s79, s79, s80
    s_add_u32 s79, s79, {ML}
    v_lshlrev_b32 v5, 13, v8
    v_lshl_add_u32 v5, v9, 4, v5            ; g*8192 + c*16
    v_and_b32 v6, 3, v0
    v_lshlrev_b32 v6, 6, v6
    v_lshrrev_b32 v15, 2, v0
    v_lshl_add_u32 v6, v15, 2, v6
    v_lshlrev_b32 v7, 6, v8
    s_waitcnt lgkmcnt(0)
    s_barrier        ; B2''')
    stamp('b2')
    A(f'''
    s_barrier        ; B3a
    s_cmp_eq_u32 s32, 0
    s_cbranch_scc1 L_pg
    s_barrier        ; B3 (B role)
L_pg:''')
    stamp('pgs')
    A('s_mov_b32 s81, 0')
    if opt.get('mlpre', 1):
        A(f'''
    s_cmp_eq_u32 s32, 0
    s_cbranch_scc0 L_pgather
L_mlpoll:
    buffer_load_dwordx4 v[12:15], v2, s[64:67], s79 offen {lp}
    s_add_u32 s81, s81, 1
    s_cmp_gt_u32 s81, {SPIN}
    s_cbranch_scc1 L_pgather
    s_waitcnt vmcnt(0)
    v_cmp_ne_u32 vcc, s72, v15
    s_cbranch_vccnz L_mlpoll''')
    A('L_pgather:')
    A(f'buffer_load_dwordx4 v[12:15], v2, s[64:67], s79 offen {lp}')
    for i in range(16):
        r = 16 + i * 4
        if i == 0: A(f'buffer_load_dwordx4 v[{r}:{r+3}], v5, s[64:67], s78 offen {lp}')
        else: A(f's_add_u32 s70, s78, {i * 4 * 8192}\nbuffer_load_dwordx4 v[{r}:{r+3}], v5, s[64:67], s70 offen {lp}')
    A(f's_add_u32 s81, s81, 1\ns_waitcnt vmcnt(0)')
    for k in range(17):
        A(f'v_cmpx_eq_u32 vcc, s72, v{13+4*k}\nv_cmpx_eq_u32 vcc, s72, v{15+4*k}')
    A(f'''
    s_cmp_eq_u64 exec, -1
    s_mov_b64 exec, -1
    s_cbranch_scc1 L_pok
    s_cmp_gt_u32 s81, {SPIN}
    s_cbranch_scc0 L_pgather
L_pok:''')
    stamp('pgok')
    cstamp('cpg')
    def allred(reg, tmp, op):
        for n in (1, 2, 4, 8):
            A(f's_nop 1\n{op}_dpp v{reg}, v{reg}, v{reg} row_ror:{n} row_mask:0xf bank_mask:0xf')
        xg(reg, tmp, op)
    A('s_nop 2\nv_mov_b32 v10, v12')
    allred(10, 11, 'v_max_f32')
    A(f'''
    v_sub_f32 v12, v12, v10
    v_mul_f32 v12, s76, v12
    v_exp_f32 v12, v12
    s_nop 0
    ds_write_b32 v6, v12 offset:{LW}
    v_mul_f32 v14, v14, v12
    s_waitcnt lgkmcnt(0)''')
    for k in range(4): A(f'ds_read_b128 v[{80+4*k}:{83+4*k}], v7 offset:{LW + 16*k}')
    allred(14, 11, 'v_add_f32')
    A('v_rcp_f32 v14, v14\ns_waitcnt lgkmcnt(0)')
    A('v_mul_f32 v10, v80, v16\nv_mul_f32 v11, v80, v18\nv_mul_f32 v12, v81, v20\nv_mul_f32 v13, v81, v22')
    for i in range(2, 16):
        a = 10 + 2 * (i & 1)
        A(f'v_fmac_f32 v{a}, v{80+i}, v{16+4*i}\nv_fmac_f32 v{a+1}, v{80+i}, v{18+4*i}')
    A('v_add_f32 v10, v10, v12\nv_add_f32 v11, v11, v13')
    xg(10, 12, 'v_add_f32'); xg(11, 12, 'v_add_f32')
    A(f'''
    v_mul_f32 v10, v10, v14
    v_mul_f32 v11, v11, v14
    v_cvt_pk_bf16_f32 v10, v10, v11
    s_mov_b64 exec, 0xffff
    ds_write_b32 v4, v10 offset:{LOF}
    s_mov_b64 exec, -1
    s_lshl_b32 s78, s32, 20                 ; br*128*8192
    s_lshl_b32 s79, s33, 6
    s_add_u32 s78, s78, s79
    s_add_u32 s78, s78, {OP}
    v_lshrrev_b32 v5, 2, v0
    v_lshlrev_b32 v5, 13, v5
    v_and_b32 v6, 3, v0
    v_lshl_add_u32 v5, v6, 4, v5            ; (l>>2)*8192 + (l&3)*16
    s_cmp_eq_u32 s32, 0
    s_cbranch_scc0 L_nob3
    s_barrier        ; B3 (A role)
L_nob3:
    s_waitcnt lgkmcnt(0)
    s_barrier        ; B4''')
    stamp('b4')
    A('s_mov_b32 s81, 0\nL_fgather:')
    for i in range(8):
        r = 16 + i * 4
        if i == 0: A(f'buffer_load_dwordx4 v[{r}:{r+3}], v5, s[64:67], s78 offen {lp}')
        else: A(f's_add_u32 s70, s78, {i * 16 * 8192}\nbuffer_load_dwordx4 v[{r}:{r+3}], v5, s[64:67], s70 offen {lp}')
    A(f's_add_u32 s81, s81, 1\ns_waitcnt vmcnt(0)')
    for k in range(8):
        A(f'v_cmpx_eq_u32 vcc, s72, v{17+4*k}\nv_cmpx_eq_u32 vcc, s72, v{19+4*k}')
    A(f'''
    s_cmp_eq_u64 exec, -1
    s_mov_b64 exec, -1
    s_cbranch_scc1 L_fok
    s_cmp_gt_u32 s81, {SPIN}
    s_cbranch_scc0 L_fgather
L_fok:
    s_nop 2''')
    stamp('fok')
    cstamp('cf')
    for st in (16, 8, 4):
        for r in range(16, 16 + st, 4):
            A(f'v_add_f32 v{r}, v{r}, v{r+st}\nv_add_f32 v{r+2}, v{r+2}, v{r+st+2}')
    for n in (4, 8):
        A(f's_nop 1\nv_add_f32_dpp v16, v16, v16 row_ror:{n} row_mask:0xf bank_mask:0xf\nv_add_f32_dpp v18, v18, v18 row_ror:{n} row_mask:0xf bank_mask:0xf')
    xg(16, 12, 'v_add_f32'); xg(18, 12, 'v_add_f32')
    A(f'''
    v_cvt_pk_bf16_f32 v16, v16, v18
    s_lshl_b32 s78, s2, 4
    s_mov_b64 exec, 0xf
    buffer_store_dword v16, v4, s[68:71], s78 offen
    s_cmp_eq_u32 s2, 0
    s_cbranch_scc0 L_noep
    s_mov_b64 exec, 1
    v_mov_b32 v17, s72
    global_store_dword v4, v17, s[28:29] sc1
L_noep:
    s_mov_b64 exec, -1''')
    stamp('end')
    if opt.get('parprobe'):
        A('s_cmp_eq_u32 s2, 0\ns_cbranch_scc0 L_fin\ns_waitcnt vmcnt(0)\ns_sleep 127\ns_sleep 127\nv_mov_b32 v30, 0')
        bufs = [6, 8, 10, 12, 16, 18, 20, 22, 28]
        for bi, p in enumerate(bufs):
          for pg in range(1):
            A(f'v_mov_b32 v1, {0x104000 + 0x40}\nglobal_load_dword v3, v1, s[{p}:{p+1}] nt\ns_waitcnt vmcnt(0)\ns_mov_b32 s40, 0\ns_mov_b32 s41, 0')
            for k in range(8):
                for hf in range(2):
                    A(f'''v_mov_b32 v1, {0x100000 + k * 0x8000 + hf * 0x2000 + 0x1080}
    s_memtime s[36:37]
    s_waitcnt lgkmcnt(0)
    global_load_dword v3, v1, s[{p}:{p+1}] nt
    s_waitcnt vmcnt(0)
    s_memtime s[38:39]
    s_waitcnt lgkmcnt(0)
    s_sub_u32 s38, s38, s36
    s_min_u32 s38, s38, 2000
    s_add_u32 s{40+hf}, s{40+hf}, s38''')
            A(f's_lshl_b32 s40, s40, 16\ns_or_b32 s40, s40, s41\nv_mov_b32 v3, s40\nv_mov_b32 v1, {bi*4}\nglobal_store_dword v1, v3, s[26:27]')
        A('s_getreg_b32 s40, hwreg(HW_REG_XCC_ID)\nv_mov_b32 v3, s40\nv_mov_b32 v1, 60\nglobal_store_dword v1, v3, s[26:27]')
        for i, p in enumerate([16, 18, 28]):
            A(f's_lshr_b32 s40, s{p}, 20\ns_lshl_b32 s41, s{p+1}, 12\ns_or_b32 s40, s40, s41\nv_mov_b32 v3, s40\nv_mov_b32 v1, {40+4*i}\nglobal_store_dword v1, v3, s[26:27]')
    if opt.get('hold'):
        A(f'''
L_hold:
    s_memrealtime s[86:87]
    s_waitcnt lgkmcnt(0)
    s_sub_u32 s86, s86, s84
    s_cmp_lt_u32 s86, {opt['hold'] * 100}
    s_cbranch_scc1 L_hold''')
    A('L_fin:')
    if stamps:
        A('s_waitcnt vmcnt(0) lgkmcnt(0)')
        for k in range(16): A(f'v_mov_b32 v{16+k}, s{84+k}')
        A(f'''
    s_mul_i32 s78, s2, 5
    s_add_u32 s78, s78, s3
    s_lshl_b32 s78, s78, 6
    s_add_u32 s78, s78, {STAMP}
    v_mov_b32 v1, s78
    s_mov_b64 exec, 1''')
        for k in range(4): A(f'global_store_dwordx4 v1, v[{16+4*k}:{19+4*k}], s[28:29] offset:{16*k}')
    A('''
L_end:
    s_endpgm
.section .rodata,"a"
.p2align 6
''')
    A(kdesc(name, 256, 102, 160).replace('.end_amdhsa', '  .amdhsa_float_denorm_mode_32 3\n.end_amdhsa'))
    t = A.text()
    if NOST:
        t = '\n'.join(('s_nop 0' if 'buffer_store' in l else l) for l in t.split('\n'))
    open(fn, 'w').write(t)

if __name__ == '__main__':
    import json
    for spec in sys.argv[1:]:
        fn, _, o = spec.partition(':')
        opt = {}
        for kv in filter(None, o.split(',')):
            k, _, v = kv.partition('=')
            try: v = int(v, 0)
            except ValueError: v = v.replace('+', ' ')
            opt[k] = v
        gen(fn, stamps=bool(opt.get('st')), pol=opt.get('pol', 'nt'), opt=opt)
```

```python
import sys
from asmlib import *

QP   = 0x1000
PF   = 0x12000
POOL = 0x14000
ML   = 0x18000
PART = 0x40000
OP   = 0x240000
WSSZ = 0x340000
STAMP = 0x10000000
LQP = 0
LQ  = 2048
LQB = 8 * 272
LO  = 6656
LOW = 8 * 528
LOB = 4 * LOW
LML = LO + 2 * LOB
LOF = LML + 512
LW  = LOF + 64
LDSSZ = LW + 256
SPIN = 400000

def gen(fn, opt=None):
    opt = opt or {}
    stamps = bool(opt.get('st'))
    pol = opt.get('pol', 'nt')
    NS = opt.get('NS', 6)
    D = opt.get('D', 8); DL = opt.get('DL', 8); DW = opt.get('DW', 6)
    W0 = opt.get('W0', 0); W1 = opt.get('W1', min(DW, 8)); QC = opt.get('QC', 14)
    KST = 1024 if opt.get('klin') else 64
    A = Asm()
    name = KN + '_kernel'
    A(open('cdna_kernels/' + KN + '.s.ref').read().split('; Override launch')[0].rstrip('\n'))
    A(header([(None, 256, 320, LDSSZ)]))
    A(kstart(name))
    insync = [0]
    CS = opt.get('cs', 'start.b1.preb2.loop.vlast.wo.b4.end').split('.')
    SS = opt.get('ss', 'start.qpre.qgat.ppre.pgok.b4.fok.end').split('.')
    def stamp(nm):
        L = SS if insync[0] else CS
        if stamps and nm in L:
            k = L.index(nm)
            A(f's_memrealtime s[{84 + 2 * k}:{85 + 2 * k}]')
    def cstamp(nm, reg='s81'):
        L = SS if insync[0] else CS
        if stamps and nm in L:
            k = L.index(nm)
            A(f's_waitcnt lgkmcnt(0)\ns_mul_i32 s{84+2*k}, {reg}, 100\ns_add_u32 s{84+2*k}, s{84+2*k}, s84\ns_addc_u32 s{85+2*k}, s85, 0')
    def srd(d, lo, hi, off, size):
        if off is None:
            A(f's_mov_b32 s{d}, s{lo}\ns_mov_b32 s{d+1}, s{hi}')
        else:
            A(f's_add_u32 s{d}, s{lo}, {off}\ns_addc_u32 s{d+1}, s{hi}, 0')
        A(f's_mov_b32 s{d+2}, {size}\ns_mov_b32 s{d+3}, 0x20000')
    def pace(d): A(f's_waitcnt vmcnt({d - 1})')
    def steps(L, d):
        for pre, ld in L:
            if pre: A(pre.rstrip())
            pace(d)
            A(ld)
    def xg(reg, tmp, op):
        A(f'v_mov_b32 v{tmp}, v{reg}\ns_nop 1\nv_permlane16_swap_b32 v{reg}, v{tmp}\ns_nop 1\n{op} v{reg}, v{reg}, v{tmp}')
        A(f'v_mov_b32 v{tmp}, v{reg}\ns_nop 1\nv_permlane32_swap_b32 v{reg}, v{tmp}\ns_nop 1\n{op} v{reg}, v{reg}, v{tmp}')
    def xgn(regs, tmps, op):
        for sw in ('v_permlane16_swap_b32', 'v_permlane32_swap_b32'):
            for r, t in zip(regs, tmps): A(f'v_mov_b32 v{t}, v{r}')
            if len(regs) < 3: A('s_nop 1')
            for r, t in zip(regs, tmps): A(f'{sw} v{r}, v{t}')
            if len(regs) < 3: A('s_nop 1')
            for r, t in zip(regs, tmps): A(f'{op} v{r}, v{r}, v{t}')
    def perm(dst, src, e, njj):
        dd, hi = e >> 1, e & 1
        for jj in range(njj):
            A(f'v_perm_b32 v{dst+jj}, v{src+(2*jj+1)*4+dd}, v{src+2*jj*4+dd}, s{74 if hi else 73}')
    A(f'''
    s_cmp_ge_u32 s2, 256
    s_cbranch_scc1 L_end
    s_load_dwordx16 s[4:19], s[0:1], 0
    s_load_dwordx8 s[20:27], s[0:1], 64
    s_load_dwordx2 s[28:29], s[0:1], 96     ; ws''')
    stamp('start')
    if opt.get('hold'): A('s_memrealtime s[84:85]')
    A(f'''
    v_lshrrev_b32 v1, 6, v0
    v_and_b32 v0, 63, v0
    v_readfirstlane_b32 s3, v1
    s_lshr_b32 s30, s2, 6
    s_and_b32 s31, s2, 63                   ; chunk
    s_lshr_b32 s32, s2, 7
    s_and_b32 s33, s2, 127
    v_lshlrev_b32 v2, 4, v0                 ; lane*16
    v_lshrrev_b32 v8, 4, v0                 ; g
    v_and_b32 v9, 15, v0                    ; n
    s_cmp_eq_u32 s3, 4
    s_cbranch_scc1 L_sync''')
    A(f'''
    ; vWQ (v3) = (l>>3)*8*8192 + (l&7)*16
    v_lshrrev_b32 v3, 3, v0
    v_lshlrev_b32 v3, 16, v3
    v_and_b32 v15, 7, v0
    v_lshl_add_u32 v3, v15, 4, v3
    ; vX (v4) = (2g + (n&1))*16
    v_and_b32 v15, 1, v0
    v_lshl_add_u32 v4, v8, 1, v15
    v_lshlrev_b32 v4, 4, v4
    s_and_b32 s34, s33, 63
    s_lshr_b32 s35, s33, 6
    s_lshl_b32 s78, s34, 7                  ; cg*128 B
    s_lshl_b32 s79, s35, 22
    s_add_u32 s78, s78, s79
    s_lshl_b32 s79, s3, 20
    s_add_u32 s78, s78, s79
    s_lshl_b32 s80, s35, 10                 ; x: half*1024
    s_lshl_b32 s79, s3, 8
    s_add_u32 s80, s80, s79                 ; + wave*256
    s_sub_u32 s54, 0x800000, s78
    s_mov_b32 s55, 0x20000
    s_mov_b32 s62, 2048
    s_mov_b32 s63, 0x20000
    s_cmp_eq_u32 s32, 0
    s_waitcnt lgkmcnt(0)
    s_cselect_b32 s52, s10, s20
    s_cselect_b32 s53, s11, s21
    s_cselect_b32 s60, s4, s14
    s_cselect_b32 s61, s5, s15
    s_cselect_b32 s56, s12, s22
    s_cselect_b32 s57, s13, s23
    s_add_u32 s52, s52, s78
    s_addc_u32 s53, s53, 0''')
    WQ = 80
    for st in range(2):
        for j in range(8):
            off = (st * 64 + j) * 8192
            r = WQ + (st * 8 + j) * 4
            if off == 0:
                A(f'buffer_load_dwordx4 v[{r}:{r+3}], v3, s[52:55], 0 offen {pol}')
                A('buffer_load_dwordx4 v[64:67], v4, s[60:63], s80 offen\nbuffer_load_dwordx4 v[68:71], v4, s[60:63], s80 offen offset:128')
            else:
                A(f's_mov_b32 s70, {off}\nbuffer_load_dwordx4 v[{r}:{r+3}], v3, s[52:55], s70 offen {pol}')
    A(f'''
    s_load_dword s72, s[28:29], 0           ; epoch
    s_mov_b32 s73, 0x05040100
    s_mov_b32 s74, 0x07060302
    s_mov_b32 s75, 0x3db504f3               ; 128^-0.5
    s_mov_b32 s76, 0x3fb8aa3b               ; log2(e)
    s_mov_b32 s77, 0xffff0000
    ; vK (v1) = (4*(n&3) + (n>>2))*256 + g*16
    v_and_b32 v15, 3, v9
    v_lshrrev_b32 v1, 2, v9
    v_lshl_add_u32 v1, v15, 2, v1
    v_lshlrev_b32 v1, 8, v1
    v_lshl_add_u32 v1, v8, 4, v1
    {'v_mov_b32 v1, v2' if opt.get('klin') else ''}
    s_lshl_b32 s78, s30, 24
    s_lshl_b32 s80, s31, 14
    s_add_u32 s80, s80, s78
    s_add_u32 s80, s80, {(65536 - 4096) * 256}
    s_lshl_b32 s81, s3, 12
    s_add_u32 s80, s80, s81''')
    srd(36, 16, 17, 's78', 0x1000000); srd(40, 18, 19, 's78', 0x1000000)
    srd(44, 6, 7, 's80', 0x1000); srd(48, 8, 9, 's80', 0x1000)
    srd(64, 28, 29, None, WSSZ)
    A(f'''
    s_lshl_b32 s78, s33, 16
    s_add_u32 s56, s56, s78
    s_addc_u32 s57, s57, 0
    s_mov_b32 s58, 0x10000
    s_mov_b32 s59, 0x20000
    s_lshl_b32 s71, s3, 13                  ; wave*8192
    s_mul_i32 s60, s31, {NS}
    s_lshl_b32 s82, s60, 15
    s_add_u32 s82, s82, s71
    s_add_u32 s60, s60, {(2 - 64 * NS) & 0xffffffff}
    s_mov_b32 s61, {NS - 3}
    s_lshl_b32 s78, s30, 10
    s_lshl_b32 s79, s3, 8
    s_add_u32 s78, s78, s79
    s_add_u32 s78, s78, {POOL}
    s_add_u32 s34, s28, s78
    s_addc_u32 s35, s29, 0
    v_and_b32 v15, 7, v9
    v_mul_u32_u24 v10, 272, v15
    v_lshl_add_u32 v10, v8, 4, v10
    v_mul_u32_u24 v11, 528, v15
    v_lshl_add_u32 v11, v8, 7, v11
    s_mul_i32 s78, s3, {LOW}
    v_add_u32 v11, s78, v11
    v_lshrrev_b32 v15, 5, v0
    s_lshl_b32 s78, s3, 1
    v_add_u32 v15, s78, v15                 ; h
    v_mul_u32_u24 v12, 528, v15
    v_and_b32 v7, 31, v0
    v_lshl_add_u32 v12, v7, 4, v12
    v_lshlrev_b32 v13, 9, v15
    v_lshl_add_u32 v13, v7, 4, v13
    v_lshlrev_b32 v3, 5, v15
    v_lshlrev_b32 v4, 5, v0
    s_lshl_b32 s78, s3, 3
    v_add_u32 v4, s78, v4
    v_lshlrev_b32 v14, 12, v8
    v_lshl_add_u32 v14, v9, 4, v14
    s_lshl_b32 s78, s3, 9
    v_add_u32 v14, s78, v14''')
    def kl(dst, srdn, soff, n16):
        L = []
        for t in range(n16):
            so = soff if t == 0 else 's70'
            for m in range(4):
                r = dst + t * 16 + m * 4
                pre = f's_add_u32 s70, {soff}, 4096\n' if (t == 1 and m == 0) else ''
                L.append((pre, f'buffer_load_dwordx4 a[{r}:{r+3}], v1, {srdn}, {so} offen offset:{m*KST} {pol}'))
        return L
    def vl(dst, srdn, soff, n):
        L = []
        for j in range(n):
            so = soff if j < 4 else 's70'
            r = dst + j * 4
            pre = f's_add_u32 s70, {soff}, 4096\n' if j == 4 else ''
            L.append((pre, f'buffer_load_dwordx4 v[{r}:{r+3}], v2, {srdn}, {so} offen offset:{(j%4)*1024} {pol}'))
        return L
    def wol(dst, cg):
        L = []
        for j in range(8):
            off = (8 * (j & 3) + (j >> 2)) * 2048 + cg * 256
            r = dst + j * 4
            lo = off & 4095
            L.append((f's_mov_b32 s70, {off - lo}\n', f'buffer_load_dwordx4 v[{r}:{r+3}], v14, s[56:59], s70 offen offset:{lo} {pol}'))
        return L
    def qset(st):
        T = 48
        src = WQ + st * 32
        xr = 64 + st * 4
        for e in range(9):
            if e < 8: perm(T + (e % 4) * 4, src, e, 4)
            if e >= 1:
                if e == 8: A('s_nop 1')
                t = T + ((e - 1) % 4) * 4
                d = 32 + (e - 1) * 4
                c = '0' if st == 0 else f'a[{d}:{d+3}]'
                A(f'v_mfma_f32_16x16x32_bf16 a[{d}:{d+3}], v[{t}:{t+3}], v[{xr}:{xr+3}], {c}')
    A('s_waitcnt vmcnt(8)')
    qset(0)
    LA = kl(64, 's[44:47]', '0', 1) + vl(144, 's[48:51]', '0', 4)
    steps(LA[:D], D)
    A(f's_waitcnt vmcnt({D})')
    qset(1)
    A(f'''
    v_lshlrev_b32 v15, 7, v8
    s_lshl_b32 s78, s3, 9
    v_add_u32 v15, s78, v15
    s_mov_b32 exec_lo, 0x00010001
    s_mov_b32 exec_hi, 0x00020002
    s_nop 4''')
    for e in range(8):
        A(f'ds_write_b128 v15, a[{32+e*4}:{35+e*4}] offset:{LQP + e*16}')
    A('s_mov_b64 exec, -1\ns_waitcnt lgkmcnt(0)\ns_add_u32 s72, s72, 1\ns_and_b32 s83, s72, 0xff\ns_barrier        ; B1')
    stamp('b1')
    L1 = kl(32, 's[36:39]', 's82', 2)
    L1[0] = ('s_add_u32 s82, s82, 0x8000\n', L1[0][1])
    LR = LA[D:] + kl(0, 's[36:39]', 's82', 2) + vl(16, 's[40:43]', 's82', 8) + L1 + vl(48, 's[40:43]', 's82', 8)
    steps(LR[:QC], D)
    A('s_barrier        ; B1b')
    steps(LR[QC:], D)
    stamp('preb2')
    A('s_barrier        ; B2')
    stamp('b2')
    ACC, TT, S, U, P = 80, 112, 128, 136, 140
    Q = 80
    def qfrag(br):
        for m in range(4):
            A(f'ds_read_b128 a[{Q+m*4}:{Q+m*4+3}], v10 offset:{LQ + br*LQB + m*64}')
    def qk(kb, nt):
        for m in range(4):
            for t in range(nt):
                c = '0' if m == 0 else f'v[{S+t*4}:{S+t*4+3}]'
                A(f'v_mfma_f32_16x16x32_bf16 v[{S+t*4}:{S+t*4+3}], a[{kb+t*16+m*4}:{kb+t*16+m*4+3}], a[{Q+m*4}:{Q+m*4+3}], {c}')
    def roundscale(nv):
        for k in range(nv // 2): A(f'v_cvt_pk_bf16_f32 v{U+k}, v{S+2*k}, v{S+2*k+1}')
        for k in range(nv // 2):
            A(f'v_lshlrev_b32 v{S+2*k}, 16, v{U+k}\nv_and_b32 v{S+2*k+1}, s77, v{U+k}')
        for k in range(nv): A(f'v_mul_f32 v{S+k}, s75, v{S+k}')
        for k in range(nv // 2): A(f'v_cvt_pk_bf16_f32 v{U+k}, v{S+2*k}, v{S+2*k+1}')
        for k in range(nv // 2):
            A(f'v_lshlrev_b32 v{S+2*k}, 16, v{U+k}\nv_and_b32 v{S+2*k+1}, s77, v{U+k}')
    def exps(nv, first):
        A('v_mul_f32 v7, s76, v5')
        for k in range(nv): A(f'v_fma_f32 v{S+k}, v{S+k}, s76, -v7')
        for k in range(nv): A(f'v_exp_f32 v{S+k}, v{S+k}')
        A('s_nop 0')
        for k in range(nv // 2): A(f'v_cvt_pk_bf16_f32 v{P+k}, v{S+2*k}, v{S+2*k+1}')
        if first:
            A(f'v_add_f32 v6, v{S}, v{S+1}')
            for k in range(2, nv): A(f'v_add_f32 v6, v6, v{S+k}')
        else:
            for k in range(0, nv, 2): A(f'v_add_f32 v{S+k}, v{S+k}, v{S+k+1}')
            for k in range(0, nv, 4): A(f'v_add_f32 v{S+k}, v{S+k}, v{S+k+2}')
            A(f'v_add_f32 v{S}, v{S}, v{S+4}\nv_add_f32 v6, v6, v{S}')
    def pv(vb, half):
        njj = 2 if half else 4
        for e in range(9):
            if e < 8: perm(TT + (e % 4) * 4, vb, e, njj)
            if e >= 1:
                if e == 8: A('s_nop 1')
                elif half: A('s_nop 0')
                t = TT + ((e - 1) % 4) * 4
                d = ACC + (e - 1) * 4
                if half:
                    A(f'v_mfma_f32_16x16x16_bf16 v[{d}:{d+3}], v[{t}:{t+1}], v[{P}:{P+1}], 0')
                else:
                    A(f'v_mfma_f32_16x16x32_bf16 v[{d}:{d+3}], v[{t}:{t+3}], v[{P}:{P+3}], v[{d}:{d+3}]')
    def publish(br, bar):
        xg(6, 15, 'v_add_f32')
        A('s_mov_b32 exec_lo, 0x00ff00ff\ns_mov_b32 exec_hi, 0x00ff00ff')
        for e in range(8):
            A(f'ds_write_b128 v11, v[{ACC+e*4}:{ACC+e*4+3}] offset:{LO + br*LOB + e*16}')
        A(f'''
    s_mov_b64 exec, 0xff
    ds_write2_b32 v4, v5, v6 offset0:{0} offset1:{1}
    s_mov_b64 exec, -1
    s_lshl_b32 s78, s2, 12
    s_add_u32 s78, s78, {PART + br * 0x100000}
    s_lshl_b32 s79, s30, 12
    s_lshl_b32 s80, s31, 3
    s_add_u32 s79, s79, s80
    s_add_u32 s79, s79, {ML + br * 0x4000}
    v_mov_b32 v15, s83
    s_movk_i32 s70, 0xff
    s_waitcnt lgkmcnt(0)
    s_barrier        ; {bar}''')
        stamp('bar' + str(br))
        A(f'ds_read_b128 v[{TT}:{TT+3}], v3\nds_read_b128 v[{TT+4}:{TT+7}], v3 offset:16')
        for w in range(4):
            A(f'ds_read_b128 v[{ACC+w*4}:{ACC+w*4+3}], v12 offset:{LO + br * LOB + w * LOW}')
        m = [TT, TT + 2, TT + 4, TT + 6]; l = [TT + 1, TT + 3, TT + 5, TT + 7]
        R = S
        if br == 1:
            A(f'''
    s_lshl_b32 s80, s30, 11
    s_lshl_b32 s62, s3, 9
    s_add_u32 s80, s80, s62
    s_lshr_b32 s62, s31, 4
    s_lshl_b32 s62, s62, 7
    s_add_u32 s80, s80, s62
    s_and_b32 s62, s31, 15
    s_add_u32 s80, s80, s62
    s_add_u32 s80, s80, {PF}''')
        A(f'''
    s_waitcnt lgkmcnt(4)
    v_max3_f32 v{U}, v{m[0]}, v{m[1]}, v{m[2]}
    v_max_f32 v{U}, v{U}, v{m[3]}
    v_mul_f32 v7, s76, v{U}''')
        for w in range(4): A(f'v_fma_f32 v{m[w]}, v{m[w]}, s76, -v7')
        for w in range(4): A(f'v_exp_f32 v{m[w]}, v{m[w]}')
        A('s_waitcnt lgkmcnt(0)')
        for k in range(4): A(f'v_mul_f32 v{R+k}, v{m[0]}, v{ACC+k}')
        A(f'v_mul_f32 v{U+1}, v{m[0]}, v{l[0]}')
        for w in range(1, 4):
            for k in range(4): A(f'v_fmac_f32 v{R+k}, v{m[w]}, v{ACC+w*4+k}')
            A(f'v_fmac_f32 v{U+1}, v{m[w]}, v{l[w]}')
        for r in (R, R + 1, R + 2, R + 3, U, U + 1): A(f'v_bfi_b32 v{r}, s70, v15, v{r}')
        A(f'''
    buffer_store_dwordx4 v[{R}:{R+3}], v13, s[64:67], s78 offen sc1
    s_mov_b32 exec_lo, 1
    s_mov_b32 exec_hi, 1
    buffer_store_dwordx2 v[{U}:{U+1}], v13, s[64:67], s79 offen sc1''')
        if br == 1:
            A('s_mov_b64 exec, 1\nbuffer_store_byte v15, off, s[64:67], s80 sc1')
        A('s_mov_b64 exec, -1')
    A(f'v_add_u32 v3, {LML}, v3\nv_add_u32 v4, {LML}, v4')
    qfrag(0)
    A('s_waitcnt vmcnt(32) lgkmcnt(0)')
    qk(64, 1)
    qfrag(1)
    A('s_nop 4')
    roundscale(4)
    A(f'v_max3_f32 v5, v{S}, v{S+1}, v{S+2}\nv_max_f32 v5, v5, v{S+3}')
    xg(5, 15, 'v_max_f32')
    exps(4, True)
    pv(144, True)
    publish(0, 'B3a')
    for k in range(32): A(f'v_mov_b32 v{ACC+k}, 0')
    A('v_mov_b32 v5, 0xff7fffff\nv_mov_b32 v6, 0\ns_mov_b32 s81, 0\nv_add_u32 v3, 256, v3\nv_add_u32 v4, 256, v4')
    stamp('loop')
    A('L_loop:')
    WL = [wol(16, 0), wol(48, 1)]
    for b in range(2):
        kb, vb = b * 32, 16 + b * 32
        A('s_waitcnt vmcnt(24)')
        qk(kb, 2)
        A('s_nop 7')
        roundscale(8)
        A(f'v_max3_f32 v8, v{S}, v{S+1}, v5\nv_max3_f32 v9, v{S+2}, v{S+3}, v{S+4}\nv_max3_f32 v8, v8, v{S+5}, v{S+6}\nv_max3_f32 v8, v8, v9, v{S+7}')
        xg(8, 15, 'v_max_f32')
        A(f'''
    v_cmp_gt_f32 vcc, v8, v5
    s_cbranch_vccz L_nors{b}
    v_sub_f32 v9, v5, v8
    v_mul_f32 v9, s76, v9
    v_exp_f32 v9, v9
    v_mov_b32 v5, v8
    v_mul_f32 v6, v6, v9''')
        for k in range(32): A(f'v_mul_f32 v{ACC+k}, v{ACC+k}, v9')
        A(f'L_nors{b}:')
        exps(8, False)
        A(f'''
    s_cmp_lg_u32 s81, 0
    s_cbranch_scc1 L_s1alt{b}
    s_waitcnt lgkmcnt(0)
    s_add_u32 s82, s60, {64 * NS}
    s_cmp_ge_u32 s82, 512
    s_cbranch_scc1 L_s1none{b}
    s_lshl_b32 s82, s82, 15
    s_add_u32 s82, s82, s71''')
        steps(kl(kb, 's[36:39]', 's82', 2), DL)
        A(f'L_s1ret{b}:')
        A(f's_waitcnt vmcnt(16)')
        pv(vb, False)
        A(f'''
    s_cmp_lg_u32 s81, 0
    s_cbranch_scc1 L_s2alt{b}
    s_add_u32 s60, s60, 1
    s_sub_u32 s61, s61, 1
    s_cbranch_scc0 L_stat{b}
    s_mov_b32 s61, 0
    s_mov_b32 s60, {1 if NS < 8 else 512}
    {'s_atomic_add s60, s[34:35], 0 glc' if NS < 8 else ''}
L_stat{b}:''')
        steps(vl(vb, 's[40:43]', 's82', 8), DL)
        if b == 0: A('L_s2ret0:')
        else: A('s_branch L_loop')
    A('.set L_s2ret1, L_loop')
    for b in range(2):
        A(f'L_s1none{b}:\ns_mov_b32 s81, 1\ns_branch L_s1ret{b}')
        A(f'L_s1alt{b}:\ns_mov_b32 s81, {2 + b}')
        steps(WL[b ^ 1][W0:W1], DW); A(f's_waitcnt vmcnt({W1})\ns_branch L_s1ret{b}')
        A(f'L_s2alt{b}:\ns_cmp_lg_u32 s81, 1\ns_cbranch_scc1 L_exit')
        steps(WL[b][:W0], DL); A(f's_waitcnt vmcnt({8 + W0})\ns_branch L_s2ret{b}')
    A('L_exit:')
    stamp('vlast')
    publish(1, 'B3')
    stamp('pub')
    DW2 = opt.get('DW2', DW)
    A('s_cmp_eq_u32 s81, 2\ns_cbranch_scc1 L_wo2')
    for b in (1, 0):
        if b == 0: A('L_wo2:')
        steps(WL[b ^ 1][W1:] + WL[b], DW2)
        A('s_waitcnt vmcnt(8)')
        f = b ^ 1
        for e in range(8): perm(80 + f * 32 + e * 4, 16 + f * 32, e, 4)
        A('s_waitcnt vmcnt(0)')
        stamp('wo')
        for e in range(8): perm(80 + b * 32 + e * 4, 16 + b * 32, e, 4)
        if b == 1: A('s_branch L_wo3')
    A(f'''L_wo3:
    v_lshrrev_b32 v8, 4, v0
    v_lshlrev_b32 v7, 4, v8                 ; g*16
    v_and_b32 v9, 15, v0
    v_lshlrev_b32 v13, 5, v9                ; 32c
    v_and_b32 v9, 16, v7
    v_add_u32 v13, v13, v9                  ; + 16(g&1)
    v_lshrrev_b32 v8, 1, v8
    v_lshl_add_u32 v13, v8, 9, v13          ; + 512(g>>1)
    s_lshl_b32 s78, s2, 12
    s_lshl_b32 s79, s3, 10
    s_add_u32 s78, s78, s79
    s_add_u32 s78, s78, {OP}
    s_movk_i32 s70, 0xff
    s_barrier        ; B4
    ds_read_b128 v[24:27], v7 offset:{LOF}
    s_waitcnt lgkmcnt(0)''')
    stamp('b4')
    for x in range(16):
        A(f'v_mfma_f32_16x16x32_bf16 a[{x*4}:{x*4+3}], v[24:27], v[{80+x*4}:{83+x*4}], 0')
    A('s_mov_b64 exec, 0xffff')
    for gg in range(4):
        if gg == 2: A('s_nop 1')
        for k in range(4):
            A(f'v_accvgpr_read_b32 v{16+k}, a{(4*gg+k)*4}')
        if gg < 3: A('s_lshl_b64 exec, exec, 16')
    A('s_mov_b64 exec, -1')
    for k in range(4): A(f'v_bfi_b32 v{16+k}, s70, v15, v{16+k}')
    A('buffer_store_dwordx4 v[16:19], v13, s[64:67], s78 offen sc1')
    stamp('end')
    A('s_branch L_fin')
    A('L_sync:')
    insync[0] = 1
    A(f"s_setprio {opt.get('prio', 3)}")
    if opt.get('nosync'):
        A('s_waitcnt lgkmcnt(0)\n' + 's_barrier\n' * 6 + 's_branch L_fin')
    A('s_waitcnt lgkmcnt(0)\ns_load_dword s72, s[28:29], 0')
    srd(64, 28, 29, None, WSSZ)
    srd(68, 24, 25, None, 4096)
    A(f'''
    s_mov_b32 s76, 0x3fb8aa3b               ; log2(e)
    s_movk_i32 s77, 0xff00                  ; 0xffffff00
    s_movk_i32 s75, 0xff
    s_and_b32 s36, s2, 0xcf
    s_cmp_eq_u32 s36, 128
    s_cbranch_scc0 L_nopool
    s_bfe_u32 s36, s2, 0x20004
    s_lshl_b32 s36, s36, 10
    s_add_u32 s36, s36, {POOL}
    v_lshlrev_b32 v3, 8, v0
    v_mov_b32 v4, 0
    s_mov_b64 exec, 0xf
    buffer_store_dword v4, v3, s[64:67], s36 offen sc1
    s_mov_b64 exec, -1
    s_waitcnt vmcnt(0)
L_nopool:
    v_lshrrev_b32 v3, 5, v0
    v_lshlrev_b32 v3, 5, v3
    v_and_b32 v15, 3, v0
    v_lshl_add_u32 v3, v15, 3, v3
    v_bfe_u32 v15, v0, 2, 3
    v_add_u32 v3, v3, v15
    v_lshlrev_b32 v3, 2, v3
    v_lshlrev_b32 v4, 2, v0                 ; lane*4
    v_lshrrev_b32 v5, 5, v0
    v_mul_u32_u24 v5, 272, v5
    v_and_b32 v15, 31, v0
    v_lshl_add_u32 v5, v15, 3, v5
    s_and_b32 s34, s33, 63
    s_lshr_b32 s35, s33, 6
    s_lshl_b32 s78, s32, 15
    s_lshl_b32 s79, s35, 14
    s_add_u32 s78, s78, s79
    s_lshl_b32 s79, s34, 8
    s_add_u32 s78, s78, s79
    s_add_u32 s78, s78, {QP}
    s_lshl_b32 s80, s30, 12
    s_add_u32 s80, s80, {QP}
    s_waitcnt lgkmcnt(0)
    s_add_u32 s72, s72, 1
    s_and_b32 s74, s72, 0xff
    s_mul_i32 s82, s74, 0x01010101
    s_mov_b32 s83, s82
    v_mov_b32 v1, s74
    s_barrier        ; B1''')
    stamp('b1')
    for k in range(8): A(f'ds_read_b32 v{16+k}, v4 offset:{LQP + k*256}')
    A(f'''
    s_waitcnt lgkmcnt(0)
    v_add_f32 v16, v16, v17
    v_add_f32 v18, v18, v19
    v_add_f32 v20, v20, v21
    v_add_f32 v22, v22, v23
    v_add_f32 v16, v16, v18
    v_add_f32 v20, v20, v22
    v_add_f32 v24, v16, v20
    v_bfi_b32 v24, s75, v1, v24
    buffer_store_dword v24, v3, s[64:67], s78 offen sc1
    s_mov_b32 s81, 0
    s_barrier        ; B1b''')
    stamp('qpre')
    def check(regs, ok, retry):
        A(f'v_xor_b32 v10, s74, v{regs[0]}\nv_xor_b32 v11, s74, v{regs[1]}')
        for k, r in enumerate(regs[2:]): A(f'v_bitop3_b32 v{10 + (k & 1)}, v{10 + (k & 1)}, v{r}, s74 bitop3:0xf6')
        A(f'''v_or_b32 v10, v10, v11
    v_and_b32 v10, s75, v10
    v_cmp_ne_u32 vcc, 0, v10
    s_cbranch_vccz {ok}
    s_cmp_gt_u32 s81, {SPIN}
    s_cbranch_scc0 {retry}
{ok}:''')
    if opt.get('noqg'): A('s_branch L_qok')
    A('L_qgather:')
    for br in range(2):
        for half in range(2):
            A(f's_add_u32 s70, s80, {br * 0x8000 + half * 0x4000}')
            for i in range(4):
                r = 16 + (br * 8 + half * 4 + i) * 4
                A(f'buffer_load_dwordx4 v[{r}:{r+3}], v2, s[64:67], s70 offen offset:{i*1024} sc1')
    A(f's_add_u32 s81, s81, 1\ns_waitcnt vmcnt(0)')
    check(list(range(16, 80)), 'L_qok', 'L_qgather')
    stamp('qgat'); cstamp('cqgat')
    for br in range(2):
        for i in range(4):
            r = 16 + (br * 8 + i) * 4
            for k in range(4): A(f'v_and_b32 v{r+k}, s77, v{r+k}\nv_and_b32 v{r+16+k}, s77, v{r+16+k}\nv_add_f32 v{r+k}, v{r+k}, v{r+16+k}')
            A(f'v_cvt_pk_bf16_f32 v{r}, v{r}, v{r+1}\nv_cvt_pk_bf16_f32 v{r+1}, v{r+2}, v{r+3}')
            A(f'ds_write_b64 v5, v[{r}:{r+1}] offset:{LQ + br*LQB + i*2*272}')
    A(f'''
    s_lshr_b32 s34, s33, 2
    s_and_b32 s35, s33, 3
    s_lshl_b32 s78, s32, 20
    s_lshr_b32 s79, s34, 3
    s_lshl_b32 s79, s79, 18
    s_add_u32 s78, s78, s79
    s_and_b32 s79, s34, 7
    s_lshl_b32 s79, s79, 9
    s_add_u32 s78, s78, s79
    s_lshl_b32 s79, s35, 7
    s_add_u32 s78, s78, s79
    s_add_u32 s78, s78, {PART}
    s_lshl_b32 s79, s32, 14
    s_lshl_b32 s80, s34, 9
    s_add_u32 s79, s79, s80
    s_add_u32 s79, s79, {ML}
    v_lshrrev_b32 v15, 3, v0
    v_lshlrev_b32 v5, 12, v15
    v_and_b32 v6, 7, v0
    v_lshl_add_u32 v5, v6, 4, v5            ; (l>>3)*4096 + (l&7)*16
    v_lshlrev_b32 v3, 3, v0                 ; lane*8
    v_lshlrev_b32 v6, 5, v6
    v_lshl_add_u32 v6, v15, 2, v6
    v_lshlrev_b32 v7, 5, v15
    s_lshr_b32 s36, s34, 3
    s_lshl_b32 s36, s36, 11
    s_bfe_u32 s37, s34, 0x20001
    s_lshl_b32 s37, s37, 9
    s_add_u32 s36, s36, s37
    s_add_u32 s36, s36, {PF}
    s_add_u32 s38, s28, s36
    s_addc_u32 s39, s29, 0
    s_lshl_b32 s56, s32, 19                 ; br*128*4096
    s_lshl_b32 s57, s33, 5
    s_add_u32 s56, s56, s57
    s_add_u32 s56, s56, {OP}
    v_lshrrev_b32 v14, 1, v0
    v_lshlrev_b32 v14, 12, v14
    v_and_b32 v15, 1, v0
    v_lshl_add_u32 v14, v15, 4, v14
    s_mov_b32 s81, 0
    s_waitcnt lgkmcnt(0)
    s_barrier        ; B2
    s_barrier        ; B3a
    s_barrier        ; B3''')
    stamp('pgs')
    A('s_cmp_eq_u32 s32, 0\ns_cbranch_scc1 L_pgather\nL_sppoll:')
    for k in range(4): A(f's_load_dwordx4 s[{40+4*k}:{43+4*k}], s[38:39], {128*k} glc')
    A(f's_add_u32 s81, s81, 1\ns_cmp_gt_u32 s81, {SPIN}\ns_cbranch_scc1 L_pgather\ns_waitcnt lgkmcnt(0)')
    regs = list(range(40, 56, 2))
    for r in regs: A(f's_xor_b64 s[{r}:{r+1}], s[{r}:{r+1}], s[82:83]')
    while len(regs) > 1:
        nr = []
        for a, b in zip(regs[0::2], regs[1::2]):
            A(f's_or_b64 s[{a}:{a+1}], s[{a}:{a+1}], s[{b}:{b+1}]'); nr.append(a)
        regs = nr
    A('s_cbranch_scc1 L_sppoll')
    stamp('ppre')
    A('L_pgather:')
    A('buffer_load_dwordx2 v[12:13], v3, s[64:67], s79 offen sc1')
    for i in range(8):
        r = 16 + i * 4
        if i == 0: A(f'buffer_load_dwordx4 v[{r}:{r+3}], v5, s[64:67], s78 offen sc1')
        else: A(f's_add_u32 s70, s78, {i * 8 * 4096}\nbuffer_load_dwordx4 v[{r}:{r+3}], v5, s[64:67], s70 offen sc1')
    def allred(reg, tmp, op):
        for n in (1, 2, 4, 8):
            A(f's_nop 1\n{op}_dpp v{reg}, v{reg}, v{reg} row_ror:{n} row_mask:0xf bank_mask:0xf')
        xg(reg, tmp, op)
    A('s_add_u32 s81, s81, 1\ns_waitcnt vmcnt(8)\nv_and_b32 v48, s77, v12\nv_and_b32 v49, s77, v13\nv_mov_b32 v50, v48')
    allred(50, 51, 'v_max_f32')
    A(f'''
    v_sub_f32 v48, v48, v50
    v_mul_f32 v48, s76, v48
    v_exp_f32 v48, v48
    s_nop 0
    ds_write_b32 v6, v48 offset:{LW}
    v_mul_f32 v49, v49, v48
    s_waitcnt lgkmcnt(0)
    ds_read_b128 v[52:55], v7 offset:{LW}
    ds_read_b128 v[56:59], v7 offset:{LW + 16}''')
    allred(49, 51, 'v_add_f32')
    A('v_rcp_f32 v49, v49\ns_waitcnt vmcnt(0) lgkmcnt(0)')
    check([12, 13] + list(range(16, 48)), 'L_pok', 'L_pgather')
    stamp('pgok'); cstamp('cpg')
    for i in range(8):
        for k in range(4):
            r = 16 + 4 * i + k
            A(f'v_and_b32 v{r}, s77, v{r}')
            A(f'v_mul_f32 v{60+k}, v52, v{r}' if i == 0 else f'v_fmac_f32 v{60+k}, v{52+i}, v{r}')
    for k in range(4): A(f'v_add_f32_dpp v{60+k}, v{60+k}, v{60+k} row_ror:8 row_mask:0xf bank_mask:0xf')
    xgn([60, 61, 62, 63], [64, 65, 66, 67], 'v_add_f32')
    for k in range(4): A(f'v_mul_f32 v{60+k}, v{60+k}, v49')
    A(f'''
    v_cvt_pk_bf16_f32 v60, v60, v61
    v_cvt_pk_bf16_f32 v61, v62, v63
    s_mov_b64 exec, 0xff
    ds_write_b64 v3, v[60:61] offset:{LOF}
    s_mov_b64 exec, -1
    s_mov_b32 s81, 0
    s_waitcnt lgkmcnt(0)
    s_barrier        ; B4''')
    stamp('b4')
    A('L_fgather:')
    for i in range(4):
        r = 16 + i * 4
        if i == 0: A(f'buffer_load_dwordx4 v[{r}:{r+3}], v14, s[64:67], s56 offen sc1')
        else: A(f's_add_u32 s70, s56, {i * 32 * 4096}\nbuffer_load_dwordx4 v[{r}:{r+3}], v14, s[64:67], s70 offen sc1')
    A(f's_add_u32 s81, s81, 1\ns_waitcnt vmcnt(0)')
    check(list(range(16, 32)), 'L_fok', 'L_fgather')
    stamp('fok'); cstamp('cf')
    for r in range(16, 32): A(f'v_and_b32 v{r}, s77, v{r}')
    for k in range(4): A(f'v_add_f32 v{16+k}, v{16+k}, v{20+k}\nv_add_f32 v{24+k}, v{24+k}, v{28+k}')
    for k in range(4): A(f'v_add_f32 v{16+k}, v{16+k}, v{24+k}')
    for n in (2, 4, 8):
        for k in range(4): A(f'v_add_f32_dpp v{16+k}, v{16+k}, v{16+k} row_ror:{n} row_mask:0xf bank_mask:0xf')
    xgn([16, 17, 18, 19], [20, 21, 22, 23], 'v_add_f32')
    A(f'''
    v_cvt_pk_bf16_f32 v16, v16, v17
    v_cvt_pk_bf16_f32 v17, v18, v19
    s_lshl_b32 s78, s2, 4
    s_mov_b64 exec, 3
    buffer_store_dwordx2 v[16:17], v3, s[68:71], s78 offen
    s_cmp_eq_u32 s2, 0
    s_cbranch_scc0 L_noep
    s_mov_b64 exec, 1
    v_mov_b32 v18, s72
    buffer_store_dword v18, off, s[64:67], 0 sc1
L_noep:
    s_mov_b64 exec, -1''')
    stamp('end')
    if opt.get('hold'):
        A(f'''
L_hold:
    s_memrealtime s[86:87]
    s_waitcnt lgkmcnt(0)
    s_sub_u32 s86, s86, s84
    s_cmp_lt_u32 s86, {opt['hold'] * 100}
    s_cbranch_scc1 L_hold''')
    A('L_fin:')
    if stamps:
        A('s_waitcnt vmcnt(0) lgkmcnt(0)')
        for k in range(16): A(f'v_mov_b32 v{16+k}, s{84+k}')
        A(f'''
    s_mul_i32 s78, s2, 5
    s_add_u32 s78, s78, s3
    s_lshl_b32 s78, s78, 6
    s_add_u32 s78, s78, {STAMP}
    v_mov_b32 v1, s78
    s_mov_b64 exec, 1''')
        for k in range(4): A(f'global_store_dwordx4 v1, v[{16+4*k}:{19+4*k}], s[28:29] offset:{16*k}')
    A('''
L_end:
    s_endpgm
.section .rodata,"a"
.p2align 6
''')
    A(kdesc(name, 256, 102, 160).replace('.end_amdhsa', '  .amdhsa_float_denorm_mode_32 3\n.end_amdhsa'))
    t = A.text()
    if opt.get('nost'):
        t = '\n'.join(('s_nop 0' if 'buffer_store' in l else l) for l in t.split('\n'))
    open(fn, 'w').write(t)

if __name__ == '__main__':
    for spec in sys.argv[1:]:
        fn, _, o = spec.partition(':')
        opt = {}
        for kv in filter(None, o.split(',')):
            k, _, v = kv.partition('=')
            try: v = int(v, 0)
            except ValueError: v = v.replace('+', ' ')
            opt[k] = v
        gen(fn, opt)
```

```python
import sys
from asmlib import *

QP   = 0x1000
PF   = 0x12000
POOL = 0x14000
ML   = 0x18000
PART = 0x40000
OP   = 0x240000
WSSZ = 0x340000
STAMP = 0x10000000
LQP = 0
LQ  = 2048
LQB = 8 * 272
LO  = 6656
LOW = 8 * 528
LOB = 4 * LOW
LML = LO + 2 * LOB
LOF = LML + 512
LW  = LOF + 64
LWO = (LW + 256 + 255) // 256 * 256
PS = 1088
LDSSZ = LWO + 4 * 16 * PS
SPIN = 400000

def gen(fn, opt=None):
    opt = opt or {}
    stamps = bool(opt.get('st'))
    pol = opt.get('pol', 'nt')
    NS = opt.get('NS', 5)
    D = opt.get('D', 8); DL = opt.get('DL', 8); DW = opt.get('DW', 6)
    W0 = opt.get('W0', 0); W1 = opt.get('W1', min(DW, 8)); QC = opt.get('QC', 14)
    KST = 1024 if opt.get('klin') else 64
    A = Asm()
    name = KN + '_kernel'
    A(open('cdna_kernels/' + KN + '.s.ref').read().split('; Override launch')[0].rstrip('\n'))
    A(header([(None, 256, 320, LDSSZ)]))
    A(kstart(name))
    insync = [0]
    CS = opt.get('cs', 'start.b1.preb2.loop.vlast.wo.b4.end').split('.')
    SS = opt.get('ss', 'start.qpre.qgat.ppre.pgok.b4.fok.end').split('.')
    def stamp(nm):
        L = SS if insync[0] else CS
        if stamps and nm in L:
            k = L.index(nm)
            A(f's_memrealtime s[{84 + 2 * k}:{85 + 2 * k}]')
    def cstamp(nm, reg='s81'):
        L = SS if insync[0] else CS
        if stamps and nm in L:
            k = L.index(nm)
            A(f's_waitcnt lgkmcnt(0)\ns_mul_i32 s{84+2*k}, {reg}, 100\ns_add_u32 s{84+2*k}, s{84+2*k}, s84\ns_addc_u32 s{85+2*k}, s85, 0')
    def srd(d, lo, hi, off, size):
        if off is None:
            A(f's_mov_b32 s{d}, s{lo}\ns_mov_b32 s{d+1}, s{hi}')
        else:
            A(f's_add_u32 s{d}, s{lo}, {off}\ns_addc_u32 s{d+1}, s{hi}, 0')
        A(f's_mov_b32 s{d+2}, {size}\ns_mov_b32 s{d+3}, 0x20000')
    def pace(d): A(f's_waitcnt vmcnt({d - 1})')
    def steps(L, d):
        for pre, ld in L:
            if pre: A(pre.rstrip())
            pace(d)
            A(ld)
    def xg(reg, tmp, op):
        A(f'v_mov_b32 v{tmp}, v{reg}\ns_nop 1\nv_permlane16_swap_b32 v{reg}, v{tmp}\ns_nop 1\n{op} v{reg}, v{reg}, v{tmp}')
        A(f'v_mov_b32 v{tmp}, v{reg}\ns_nop 1\nv_permlane32_swap_b32 v{reg}, v{tmp}\ns_nop 1\n{op} v{reg}, v{reg}, v{tmp}')
    def xgn(regs, tmps, op):
        for sw in ('v_permlane16_swap_b32', 'v_permlane32_swap_b32'):
            for r, t in zip(regs, tmps): A(f'v_mov_b32 v{t}, v{r}')
            if len(regs) < 3: A('s_nop 1')
            for r, t in zip(regs, tmps): A(f'{sw} v{r}, v{t}')
            if len(regs) < 3: A('s_nop 1')
            for r, t in zip(regs, tmps): A(f'{op} v{r}, v{r}, v{t}')
    def perm(dst, src, e, njj):
        dd, hi = e >> 1, e & 1
        for jj in range(njj):
            A(f'v_perm_b32 v{dst+jj}, v{src+(2*jj+1)*4+dd}, v{src+2*jj*4+dd}, s{74 if hi else 73}')
    A(f'''
    s_cmp_ge_u32 s2, 256
    s_cbranch_scc1 L_end
    s_load_dwordx16 s[4:19], s[0:1], 0
    s_load_dwordx8 s[20:27], s[0:1], 64
    s_load_dwordx2 s[28:29], s[0:1], 96     ; ws''')
    stamp('start')
    if opt.get('hold'): A('s_memrealtime s[84:85]')
    A(f'''
    v_lshrrev_b32 v1, 6, v0
    v_and_b32 v0, 63, v0
    v_readfirstlane_b32 s3, v1
    s_lshr_b32 s30, s2, 6
    s_and_b32 s31, s2, 63                   ; chunk
    s_bfe_u32 s32, s2, 0x10003
    s_lshr_b32 s33, s2, 4
    s_lshl_b32 s33, s33, 3
    s_and_b32 s70, s2, 7
    s_add_u32 s33, s33, s70
    v_lshlrev_b32 v2, 4, v0                 ; lane*16
    v_lshrrev_b32 v8, 4, v0                 ; g
    v_and_b32 v9, 15, v0                    ; n
    s_cmp_eq_u32 s3, 4
    s_cbranch_scc1 L_sync''')
    A(f'''
    ; vWQ (v3) = (l>>3)*8*8192 + (l&7)*16
    v_lshrrev_b32 v3, 3, v0
    v_lshlrev_b32 v3, 16, v3
    v_and_b32 v15, 7, v0
    v_lshl_add_u32 v3, v15, 4, v3
    ; vX (v4) = (2g + (n&1))*16
    v_and_b32 v15, 1, v0
    v_lshl_add_u32 v4, v8, 1, v15
    v_lshlrev_b32 v4, 4, v4
    s_and_b32 s34, s33, 63
    s_lshr_b32 s35, s33, 6
    s_lshl_b32 s78, s34, 7                  ; cg*128 B
    s_lshl_b32 s79, s35, 22
    s_add_u32 s78, s78, s79
    s_lshl_b32 s79, s3, 20
    s_add_u32 s78, s78, s79
    s_lshl_b32 s80, s35, 10                 ; x: half*1024
    s_lshl_b32 s79, s3, 8
    s_add_u32 s80, s80, s79                 ; + wave*256
    s_sub_u32 s54, 0x800000, s78
    s_mov_b32 s55, 0x20000
    s_mov_b32 s62, 2048
    s_mov_b32 s63, 0x20000
    s_cmp_eq_u32 s32, 0
    s_waitcnt lgkmcnt(0)
    s_cselect_b32 s52, s10, s20
    s_cselect_b32 s53, s11, s21
    s_cselect_b32 s60, s4, s14
    s_cselect_b32 s61, s5, s15
    s_cselect_b32 s56, s12, s22
    s_cselect_b32 s57, s13, s23
    s_add_u32 s52, s52, s78
    s_addc_u32 s53, s53, 0''')
    WQ = 80
    for st in range(2):
        for j in range(8):
            off = (st * 64 + j) * 8192
            r = WQ + (st * 8 + j) * 4
            if off == 0:
                A(f'buffer_load_dwordx4 v[{r}:{r+3}], v3, s[52:55], 0 offen {pol}')
                A('buffer_load_dwordx4 v[64:67], v4, s[60:63], s80 offen\nbuffer_load_dwordx4 v[68:71], v4, s[60:63], s80 offen offset:128')
            else:
                A(f's_mov_b32 s70, {off}\nbuffer_load_dwordx4 v[{r}:{r+3}], v3, s[52:55], s70 offen {pol}')
    A(f'''
    s_load_dword s72, s[28:29], 0           ; epoch
    s_mov_b32 s73, 0x05040100
    s_mov_b32 s74, 0x07060302
    s_mov_b32 s75, 0x3db504f3               ; 128^-0.5
    s_mov_b32 s76, 0x3fb8aa3b               ; log2(e)
    s_mov_b32 s77, 0xffff0000
    ; vK (v1) = (4*(n&3) + (n>>2))*256 + g*16
    v_and_b32 v15, 3, v9
    v_lshrrev_b32 v1, 2, v9
    v_lshl_add_u32 v1, v15, 2, v1
    v_lshlrev_b32 v1, 8, v1
    v_lshl_add_u32 v1, v8, 4, v1
    {'v_mov_b32 v1, v2' if opt.get('klin') else ''}
    s_lshl_b32 s78, s30, 24
    s_lshl_b32 s80, s31, 14
    s_add_u32 s80, s80, s78
    s_add_u32 s80, s80, {(65536 - 4096) * 256}
    s_lshl_b32 s81, s3, 12
    s_add_u32 s80, s80, s81''')
    srd(36, 16, 17, 's78', 0x1000000); srd(40, 18, 19, 's78', 0x1000000)
    srd(44, 6, 7, 's80', 0x1000); srd(48, 8, 9, 's80', 0x1000)
    srd(64, 28, 29, None, WSSZ)
    A(f'''
    s_lshl_b32 s78, s33, 16
    s_add_u32 s56, s56, s78
    s_addc_u32 s57, s57, 0
    s_mov_b32 s58, 0x10000
    s_mov_b32 s59, 0x20000
    s_lshl_b32 s71, s3, 13                  ; wave*8192
    s_mul_i32 s60, s31, {NS}
    s_lshl_b32 s82, s60, 15
    s_add_u32 s82, s82, s71
    s_add_u32 s60, s60, {(2 - 64 * NS) & 0xffffffff}
    s_mov_b32 s61, {NS - 3}
    s_lshl_b32 s78, s30, 10
    s_lshl_b32 s79, s3, 8
    s_add_u32 s78, s78, s79
    s_add_u32 s78, s78, {POOL}
    s_add_u32 s34, s28, s78
    s_addc_u32 s35, s29, 0
    v_and_b32 v15, 7, v9
    v_mul_u32_u24 v10, 272, v15
    v_lshl_add_u32 v10, v8, 4, v10
    v_mul_u32_u24 v11, 528, v15
    v_lshl_add_u32 v11, v8, 7, v11
    s_mul_i32 s78, s3, {LOW}
    v_add_u32 v11, s78, v11
    v_lshrrev_b32 v15, 5, v0
    s_lshl_b32 s78, s3, 1
    v_add_u32 v15, s78, v15                 ; h
    v_mul_u32_u24 v12, 528, v15
    v_and_b32 v7, 31, v0
    v_lshl_add_u32 v12, v7, 4, v12
    v_lshlrev_b32 v13, 9, v15
    v_lshl_add_u32 v13, v7, 4, v13
    v_lshlrev_b32 v3, 5, v15
    v_lshlrev_b32 v4, 5, v0
    s_lshl_b32 s78, s3, 3
    v_add_u32 v4, s78, v4
    v_lshrrev_b32 v14, 5, v0
    v_lshlrev_b32 v14, 14, v14
    v_lshl_add_u32 v14, v7, 4, v14
    s_lshl_b32 s78, s3, 9
    v_add_u32 v14, s78, v14
    s_mul_i32 s63, s3, {16 * PS}
    s_add_u32 s63, s63, {LWO}''')
    def kl(dst, srdn, soff, n16):
        L = []
        for t in range(n16):
            so = soff if t == 0 else 's70'
            for m in range(4):
                r = dst + t * 16 + m * 4
                pre = f's_add_u32 s70, {soff}, 4096\n' if (t == 1 and m == 0) else ''
                L.append((pre, f'buffer_load_dwordx4 a[{r}:{r+3}], v1, {srdn}, {so} offen offset:{m*KST} {pol}'))
        return L
    def vl(dst, srdn, soff, n):
        L = []
        for j in range(n):
            so = soff if j < 4 else 's70'
            r = dst + j * 4
            pre = f's_add_u32 s70, {soff}, 4096\n' if j == 4 else ''
            L.append((pre, f'buffer_load_dwordx4 v[{r}:{r+3}], v2, {srdn}, {so} offen offset:{(j%4)*1024} {pol}'))
        return L
    def wol():
        L = []
        for i in range(16):
            off = (8 * ((2 * i) & 3) + (i >> 1)) * 2048
            L.append((f's_add_u32 m0, s63, {i * PS}\ns_mov_b32 s70, {off}\n', f'buffer_load_dwordx4 v14, s[56:59], s70 offen {pol} lds'))
        return L
    def qset(st):
        T = 48
        src = WQ + st * 32
        xr = 64 + st * 4
        for e in range(9):
            if e < 8: perm(T + (e % 4) * 4, src, e, 4)
            if e >= 1:
                if e == 8: A('s_nop 1')
                t = T + ((e - 1) % 4) * 4
                d = 32 + (e - 1) * 4
                c = '0' if st == 0 else f'a[{d}:{d+3}]'
                A(f'v_mfma_f32_16x16x32_bf16 a[{d}:{d+3}], v[{t}:{t+3}], v[{xr}:{xr+3}], {c}')
    A('s_waitcnt vmcnt(8)')
    qset(0)
    LA = kl(64, 's[44:47]', '0', 1) + vl(144, 's[48:51]', '0', 4)
    steps(LA[:D], D)
    A(f's_waitcnt vmcnt({D})')
    qset(1)
    A(f'''
    v_lshlrev_b32 v15, 7, v8
    s_lshl_b32 s78, s3, 9
    v_add_u32 v15, s78, v15
    s_mov_b32 exec_lo, 0x00010001
    s_mov_b32 exec_hi, 0x00020002
    s_nop 4''')
    for e in range(8):
        A(f'ds_write_b128 v15, a[{32+e*4}:{35+e*4}] offset:{LQP + e*16}')
    A('s_mov_b64 exec, -1\ns_waitcnt lgkmcnt(0)\ns_add_u32 s72, s72, 1\ns_and_b32 s83, s72, 0xff\ns_barrier        ; B1')
    stamp('b1')
    L1 = kl(32, 's[36:39]', 's82', 2)
    L1[0] = ('s_add_u32 s82, s82, 0x8000\n', L1[0][1])
    LR = LA[D:] + kl(0, 's[36:39]', 's82', 2) + vl(16, 's[40:43]', 's82', 8) + L1 + vl(48, 's[40:43]', 's82', 8)
    steps(LR[:QC], D)
    A('s_barrier        ; B1b')
    steps(LR[QC:], D)
    WL = wol()
    if opt.get('woe', 1):
        A('s_cmp_eq_u32 s32, 0\ns_cbranch_scc1 L_nowo')
        steps(WL, D)
        A('L_nowo:')
    stamp('preb2')
    A('s_barrier        ; B2')
    stamp('b2')
    ACC, TT, S, U, P = 80, 112, 128, 136, 140
    Q = 80
    def qfrag(br):
        for m in range(4):
            A(f'ds_read_b128 a[{Q+m*4}:{Q+m*4+3}], v10 offset:{LQ + br*LQB + m*64}')
    def qk(kb, nt):
        for m in range(4):
            for t in range(nt):
                c = '0' if m == 0 else f'v[{S+t*4}:{S+t*4+3}]'
                A(f'v_mfma_f32_16x16x32_bf16 v[{S+t*4}:{S+t*4+3}], a[{kb+t*16+m*4}:{kb+t*16+m*4+3}], a[{Q+m*4}:{Q+m*4+3}], {c}')
    def roundscale(nv):
        for k in range(nv // 2): A(f'v_cvt_pk_bf16_f32 v{U+k}, v{S+2*k}, v{S+2*k+1}')
        for k in range(nv // 2):
            A(f'v_lshlrev_b32 v{S+2*k}, 16, v{U+k}\nv_and_b32 v{S+2*k+1}, s77, v{U+k}')
        for k in range(nv): A(f'v_mul_f32 v{S+k}, s75, v{S+k}')
        for k in range(nv // 2): A(f'v_cvt_pk_bf16_f32 v{U+k}, v{S+2*k}, v{S+2*k+1}')
        for k in range(nv // 2):
            A(f'v_lshlrev_b32 v{S+2*k}, 16, v{U+k}\nv_and_b32 v{S+2*k+1}, s77, v{U+k}')
    def exps(nv, first):
        A('v_mul_f32 v7, s76, v5')
        for k in range(nv): A(f'v_fma_f32 v{S+k}, v{S+k}, s76, -v7')
        for k in range(nv): A(f'v_exp_f32 v{S+k}, v{S+k}')
        A('s_nop 0')
        for k in range(nv // 2): A(f'v_cvt_pk_bf16_f32 v{P+k}, v{S+2*k}, v{S+2*k+1}')
        if first:
            A(f'v_add_f32 v6, v{S}, v{S+1}')
            for k in range(2, nv): A(f'v_add_f32 v6, v6, v{S+k}')
        else:
            for k in range(0, nv, 2): A(f'v_add_f32 v{S+k}, v{S+k}, v{S+k+1}')
            for k in range(0, nv, 4): A(f'v_add_f32 v{S+k}, v{S+k}, v{S+k+2}')
            A(f'v_add_f32 v{S}, v{S}, v{S+4}\nv_add_f32 v6, v6, v{S}')
    def pv(vb, half):
        njj = 2 if half else 4
        for e in range(9):
            if e < 8: perm(TT + (e % 4) * 4, vb, e, njj)
            if e >= 1:
                if e == 8: A('s_nop 1')
                elif half: A('s_nop 0')
                t = TT + ((e - 1) % 4) * 4
                d = ACC + (e - 1) * 4
                if half:
                    A(f'v_mfma_f32_16x16x16_bf16 v[{d}:{d+3}], v[{t}:{t+1}], v[{P}:{P+1}], 0')
                else:
                    A(f'v_mfma_f32_16x16x32_bf16 v[{d}:{d+3}], v[{t}:{t+3}], v[{P}:{P+3}], v[{d}:{d+3}]')
    def publish(br, bar):
        xg(6, 15, 'v_add_f32')
        A('s_mov_b32 exec_lo, 0x00ff00ff\ns_mov_b32 exec_hi, 0x00ff00ff')
        for e in range(8):
            A(f'ds_write_b128 v11, v[{ACC+e*4}:{ACC+e*4+3}] offset:{LO + br*LOB + e*16}')
        A(f'''
    s_mov_b64 exec, 0xff
    ds_write2_b32 v4, v5, v6 offset0:{0} offset1:{1}
    s_mov_b64 exec, -1
    s_lshl_b32 s78, s2, 12
    s_add_u32 s78, s78, {PART + br * 0x100000}
    s_lshl_b32 s79, s30, 12
    s_lshl_b32 s80, s31, 3
    s_add_u32 s79, s79, s80
    s_add_u32 s79, s79, {ML + br * 0x4000}
    v_mov_b32 v15, s83
    s_movk_i32 s70, 0xff
    s_waitcnt lgkmcnt(0)
    s_barrier        ; {bar}''')
        stamp('bar' + str(br))
        A(f'ds_read_b128 v[{TT}:{TT+3}], v3\nds_read_b128 v[{TT+4}:{TT+7}], v3 offset:16')
        for w in range(4):
            A(f'ds_read_b128 v[{ACC+w*4}:{ACC+w*4+3}], v12 offset:{LO + br * LOB + w * LOW}')
        m = [TT, TT + 2, TT + 4, TT + 6]; l = [TT + 1, TT + 3, TT + 5, TT + 7]
        R = S
        if br == 1:
            A(f'''
    s_lshl_b32 s80, s30, 11
    s_lshl_b32 s62, s3, 9
    s_add_u32 s80, s80, s62
    s_lshr_b32 s62, s31, 4
    s_lshl_b32 s62, s62, 7
    s_add_u32 s80, s80, s62
    s_and_b32 s62, s31, 15
    s_add_u32 s80, s80, s62
    s_add_u32 s80, s80, {PF}''')
        A(f'''
    s_waitcnt lgkmcnt(4)
    v_max3_f32 v{U}, v{m[0]}, v{m[1]}, v{m[2]}
    v_max_f32 v{U}, v{U}, v{m[3]}
    v_mul_f32 v7, s76, v{U}''')
        for w in range(4): A(f'v_fma_f32 v{m[w]}, v{m[w]}, s76, -v7')
        for w in range(4): A(f'v_exp_f32 v{m[w]}, v{m[w]}')
        A('s_waitcnt lgkmcnt(0)')
        for k in range(4): A(f'v_mul_f32 v{R+k}, v{m[0]}, v{ACC+k}')
        A(f'v_mul_f32 v{U+1}, v{m[0]}, v{l[0]}')
        for w in range(1, 4):
            for k in range(4): A(f'v_fmac_f32 v{R+k}, v{m[w]}, v{ACC+w*4+k}')
            A(f'v_fmac_f32 v{U+1}, v{m[w]}, v{l[w]}')
        for r in (R, R + 1, R + 2, R + 3, U, U + 1): A(f'v_bfi_b32 v{r}, s70, v15, v{r}')
        A(f'''
    buffer_store_dwordx4 v[{R}:{R+3}], v13, s[64:67], s78 offen sc1
    s_mov_b32 exec_lo, 1
    s_mov_b32 exec_hi, 1
    buffer_store_dwordx2 v[{U}:{U+1}], v13, s[64:67], s79 offen sc1''')
        if br == 1:
            A('s_mov_b64 exec, 1\nbuffer_store_byte v15, off, s[64:67], s80 sc1')
        A('s_mov_b64 exec, -1')
    A(f'v_add_u32 v3, {LML}, v3\nv_add_u32 v4, {LML}, v4')
    qfrag(0)
    A('s_waitcnt vmcnt(32) lgkmcnt(0)')
    qk(64, 1)
    qfrag(1)
    A('s_nop 4')
    roundscale(4)
    A(f'v_max3_f32 v5, v{S}, v{S+1}, v{S+2}\nv_max_f32 v5, v5, v{S+3}')
    xg(5, 15, 'v_max_f32')
    exps(4, True)
    pv(144, True)
    publish(0, 'B3a')
    for k in range(32): A(f'v_mov_b32 v{ACC+k}, 0')
    A('v_mov_b32 v5, 0xff7fffff\nv_mov_b32 v6, 0\ns_mov_b32 s81, 0\nv_add_u32 v3, 256, v3\nv_add_u32 v4, 256, v4')
    stamp('loop')
    if stamps: A('s_mov_b32 s80, 0')
    A('L_loop:')
    for b in range(2):
        kb, vb = b * 32, 16 + b * 32
        if stamps: A('s_add_u32 s80, s80, 1')
        A('s_waitcnt vmcnt(24)')
        qk(kb, 2)
        A('s_nop 7')
        roundscale(8)
        A(f'v_max3_f32 v8, v{S}, v{S+1}, v5\nv_max3_f32 v9, v{S+2}, v{S+3}, v{S+4}\nv_max3_f32 v8, v8, v{S+5}, v{S+6}\nv_max3_f32 v8, v8, v9, v{S+7}')
        xg(8, 15, 'v_max_f32')
        A(f'''
    v_cmp_gt_f32 vcc, v8, v5
    s_cbranch_vccz L_nors{b}
    v_sub_f32 v9, v5, v8
    v_mul_f32 v9, s76, v9
    v_exp_f32 v9, v9
    v_mov_b32 v5, v8
    v_mul_f32 v6, v6, v9''')
        for k in range(32): A(f'v_mul_f32 v{ACC+k}, v{ACC+k}, v9')
        A(f'L_nors{b}:')
        exps(8, False)
        A(f'''
    s_cmp_lg_u32 s81, 0
    s_cbranch_scc1 L_s1alt{b}
    s_waitcnt lgkmcnt(0)
    s_add_u32 s82, s60, {64 * NS}
    s_cmp_ge_u32 s82, 512
    s_cbranch_scc1 L_s1none{b}
    s_lshl_b32 s82, s82, 15
    s_add_u32 s82, s82, s71''')
        steps(kl(kb, 's[36:39]', 's82', 2), DL)
        A(f'L_s1ret{b}:')
        A(f's_waitcnt vmcnt(16)')
        pv(vb, False)
        A(f'''
    s_cmp_lg_u32 s81, 0
    s_cbranch_scc1 L_s2alt{b}
    s_add_u32 s60, s60, 1
    s_sub_u32 s61, s61, 1
    s_cbranch_scc0 L_stat{b}
    s_mov_b32 s61, 0
    s_mov_b32 s60, {1 if NS < 8 else 512}
    {'s_atomic_add s60, s[34:35], 0 glc' if NS < 8 else ''}
L_stat{b}:''')
        steps(vl(vb, 's[40:43]', 's82', 8), DL)
        if b == 0: A('L_s2ret0:')
        else: A('s_branch L_loop')
    A('.set L_s2ret1, L_loop')
    ROLE = 's32' if opt.get('woe', 1) else '0'
    for b in range(2):
        A(f'L_s1none{b}:')
        stamp('none')
        A(f's_mov_b32 s81, 1\ns_branch L_s1ret{b}')
        A(f'L_s1alt{b}:\ns_mov_b32 s81, 2\ns_cmp_eq_u32 {ROLE}, 0\ns_cbranch_scc1 L_s1wo{b}\ns_waitcnt vmcnt(0)\ns_branch L_s1ret{b}\nL_s1wo{b}:')
        steps(WL[:W1], DW); A(f's_waitcnt vmcnt({W1})\ns_branch L_s1ret{b}')
        A(f'L_s2alt{b}:\ns_cmp_lg_u32 s81, 1\ns_cbranch_scc1 L_exit')
        A(f's_waitcnt vmcnt(8)\ns_branch L_s2ret{b}')
    A('L_exit:')
    stamp('vlast'); cstamp('ctiles', 's80')
    publish(1, 'B3')
    stamp('pub')
    if opt.get('ackst'):
        A('s_waitcnt vmcnt(0)'); stamp('ack')
    DW2 = opt.get('DW2', DW)
    A(f's_cmp_eq_u32 {ROLE}, 0\ns_cbranch_scc0 L_wo3')
    steps(WL[W1:], DW2 + 3)
    A(f'''L_wo3:
    v_lshrrev_b32 v8, 4, v0                 ; g
    v_lshlrev_b32 v7, 4, v8                 ; g*16
    v_and_b32 v9, 15, v0
    v_lshl_add_u32 v13, v9, 6, v7           ; 64n + 16g
    v_bfe_u32 v9, v0, 3, 1
    v_lshl_add_u32 v12, v8, 2, v9
    v_mul_u32_u24 v12, {PS}, v12
    v_bfe_u32 v9, v0, 2, 1
    v_lshl_add_u32 v12, v9, 9, v12
    v_and_b32 v9, 3, v0
    v_lshl_add_u32 v12, v9, 3, v12
    v_add_u32 v12, s63, v12
    s_lshl_b32 s78, s32, 19
    s_lshl_b32 s79, s33, 12
    s_add_u32 s78, s78, s79
    s_lshl_b32 s79, s3, 10
    s_add_u32 s78, s78, s79
    s_add_u32 s78, s78, {OP}
    s_movk_i32 s70, 0xff''')
    for k in range(64): A(f'v_accvgpr_write_b32 a{k}, 0')
    A(f's_cmp_eq_u32 {ROLE}, 0\ns_cbranch_scc0 L_wo4\ns_waitcnt vmcnt(0)\nL_wo4:')
    stamp('wo')
    for x in range(16):
        for h in range(2):
            r = 16 + x * 4 + h * 2
            A(f'ds_read_b64_tr_b16 v[{r}:{r+1}], v12 offset:{x * 32 + h * 2 * PS}')
    A('s_mov_b32 exec_lo, 0x00010001\ns_mov_b32 exec_hi, 0x00010001\ns_waitcnt lgkmcnt(0)\ns_barrier        ; B4')
    for x in range(16):
        A(f'ds_read_b128 a[{x*4}:{x*4+3}], v7 offset:{LOF}')
        A('s_lshl_b64 exec, exec, 1' if x < 15 else 's_mov_b64 exec, -1')
    for x in range(16):
        A(f's_waitcnt lgkmcnt({15 - x})')
        if x == 0: stamp('b4')
        c = '0' if x < 2 else f'v[{80 + (x & 1) * 4}:{83 + (x & 1) * 4}]'
        A(f'v_mfma_f32_16x16x32_bf16 v[{80 + (x & 1) * 4}:{83 + (x & 1) * 4}], v[{16+x*4}:{19+x*4}], a[{x*4}:{x*4+3}], {c}')
    A('s_nop 7')
    for k in range(4): A(f'v_add_f32 v{80+k}, v{80+k}, v{84+k}')
    for k in range(4): A(f'v_bfi_b32 v{80+k}, s70, v15, v{80+k}')
    A('buffer_store_dwordx4 v[80:83], v13, s[64:67], s78 offen sc1')
    stamp('end')
    if opt.get('ackst'):
        A('s_waitcnt vmcnt(0)'); stamp('ack2')
    A('s_branch L_fin')
    A('L_sync:')
    insync[0] = 1
    A(f"s_setprio {opt.get('prio', 3)}")
    if opt.get('nosync'):
        A('s_waitcnt lgkmcnt(0)\n' + 's_barrier\n' * 6 + 's_branch L_fin')
    A('s_waitcnt lgkmcnt(0)\ns_load_dword s72, s[28:29], 0')
    srd(64, 28, 29, None, WSSZ)
    srd(68, 24, 25, None, 4096)
    A(f'''
    s_mov_b32 s76, 0x3fb8aa3b               ; log2(e)
    s_movk_i32 s77, 0xff00                  ; 0xffffff00
    s_movk_i32 s75, 0xff
    s_and_b32 s36, s33, 0x4f
    s_xor_b32 s37, s32, 1
    s_or_b32 s36, s36, s37
    s_cbranch_scc1 L_nopool
    s_bfe_u32 s36, s33, 0x20004
    s_lshl_b32 s36, s36, 10
    s_add_u32 s36, s36, {POOL}
    v_lshlrev_b32 v3, 8, v0
    v_mov_b32 v4, 0
    s_mov_b64 exec, 0xf
    buffer_store_dword v4, v3, s[64:67], s36 offen sc1
    s_mov_b64 exec, -1
    s_waitcnt vmcnt(0)
L_nopool:
    v_lshrrev_b32 v3, 5, v0
    v_lshlrev_b32 v3, 5, v3
    v_and_b32 v15, 3, v0
    v_lshl_add_u32 v3, v15, 3, v3
    v_bfe_u32 v15, v0, 2, 3
    v_add_u32 v3, v3, v15
    v_lshlrev_b32 v3, 2, v3
    v_lshlrev_b32 v4, 2, v0                 ; lane*4
    v_lshrrev_b32 v5, 5, v0
    v_mul_u32_u24 v5, 272, v5
    v_and_b32 v15, 31, v0
    v_lshl_add_u32 v5, v15, 3, v5
    s_and_b32 s34, s33, 63
    s_lshr_b32 s35, s33, 6
    s_lshl_b32 s78, s32, 15
    s_lshl_b32 s79, s35, 14
    s_add_u32 s78, s78, s79
    s_lshl_b32 s79, s34, 8
    s_add_u32 s78, s78, s79
    s_add_u32 s78, s78, {QP}
    s_lshl_b32 s80, s30, 12
    s_add_u32 s80, s80, {QP}
    s_waitcnt lgkmcnt(0)
    s_add_u32 s72, s72, 1
    s_and_b32 s74, s72, 0xff
    s_mul_i32 s82, s74, 0x01010101
    s_mov_b32 s83, s82
    v_mov_b32 v1, s74
    s_barrier        ; B1''')
    stamp('b1')
    for k in range(8): A(f'ds_read_b32 v{16+k}, v4 offset:{LQP + k*256}')
    A(f'''
    s_waitcnt lgkmcnt(0)
    v_add_f32 v16, v16, v17
    v_add_f32 v18, v18, v19
    v_add_f32 v20, v20, v21
    v_add_f32 v22, v22, v23
    v_add_f32 v16, v16, v18
    v_add_f32 v20, v20, v22
    v_add_f32 v24, v16, v20
    v_add_u32 v24, 0x80, v24
    v_bfi_b32 v24, s75, v1, v24
    buffer_store_dword v24, v3, s[64:67], s78 offen sc1
    s_mov_b32 s81, 0
    s_barrier        ; B1b''')
    stamp('qpre')
    def check(regs, ok, retry):
        A(f'v_xor_b32 v10, s74, v{regs[0]}\nv_xor_b32 v11, s74, v{regs[1]}')
        for k, r in enumerate(regs[2:]): A(f'v_bitop3_b32 v{10 + (k & 1)}, v{10 + (k & 1)}, v{r}, s74 bitop3:0xf6')
        A(f'''v_or_b32 v10, v10, v11
    v_and_b32 v10, s75, v10
    v_cmp_ne_u32 vcc, 0, v10
    s_cbranch_vccz {ok}
    s_cmp_gt_u32 s81, {SPIN}
    s_cbranch_scc0 {retry}
{ok}:''')
    if opt.get('noqg'): A('s_branch L_qok')
    A('L_qgather:')
    for br in range(2):
        for half in range(2):
            A(f's_add_u32 s70, s80, {br * 0x8000 + half * 0x4000}')
            for i in range(4):
                r = 16 + (br * 8 + half * 4 + i) * 4
                A(f'buffer_load_dwordx4 v[{r}:{r+3}], v2, s[64:67], s70 offen offset:{i*1024} sc1')
    A(f's_add_u32 s81, s81, 1\ns_waitcnt vmcnt(0)')
    check(list(range(16, 80)), 'L_qok', 'L_qgather')
    stamp('qgat'); cstamp('cqgat')
    for br in range(2):
        for i in range(4):
            r = 16 + (br * 8 + i) * 4
            for k in range(4): A(f'v_and_b32 v{r+k}, s77, v{r+k}\nv_and_b32 v{r+16+k}, s77, v{r+16+k}\nv_add_f32 v{r+k}, v{r+k}, v{r+16+k}')
            A(f'v_cvt_pk_bf16_f32 v{r}, v{r}, v{r+1}\nv_cvt_pk_bf16_f32 v{r+1}, v{r+2}, v{r+3}')
            A(f'ds_write_b64 v5, v[{r}:{r+1}] offset:{LQ + br*LQB + i*2*272}')
    A(f'''
    s_lshr_b32 s34, s33, 2
    s_and_b32 s35, s33, 3
    s_lshl_b32 s78, s32, 20
    s_lshr_b32 s79, s34, 3
    s_lshl_b32 s79, s79, 18
    s_add_u32 s78, s78, s79
    s_and_b32 s79, s34, 7
    s_lshl_b32 s79, s79, 9
    s_add_u32 s78, s78, s79
    s_lshl_b32 s79, s35, 7
    s_add_u32 s78, s78, s79
    s_add_u32 s78, s78, {PART}
    s_lshl_b32 s79, s32, 14
    s_lshl_b32 s80, s34, 9
    s_add_u32 s79, s79, s80
    s_add_u32 s79, s79, {ML}
    v_lshrrev_b32 v15, 3, v0
    v_lshlrev_b32 v5, 12, v15
    v_and_b32 v6, 7, v0
    v_lshl_add_u32 v5, v6, 4, v5            ; (l>>3)*4096 + (l&7)*16
    v_lshlrev_b32 v3, 3, v0                 ; lane*8
    v_lshlrev_b32 v6, 5, v6
    v_lshl_add_u32 v6, v15, 2, v6
    v_lshlrev_b32 v7, 5, v15
    s_lshr_b32 s36, s34, 3
    s_lshl_b32 s36, s36, 11
    s_bfe_u32 s37, s34, 0x20001
    s_lshl_b32 s37, s37, 9
    s_add_u32 s36, s36, s37
    s_add_u32 s36, s36, {PF}
    s_add_u32 s38, s28, s36
    s_addc_u32 s39, s29, 0
    s_lshl_b32 s56, s32, 19                 ; br*128*4096
    s_lshl_b32 s57, s33, 5
    s_add_u32 s56, s56, s57
    s_add_u32 s56, s56, {OP}
    v_lshrrev_b32 v14, 1, v0
    v_lshlrev_b32 v14, 12, v14
    v_and_b32 v15, 1, v0
    v_lshl_add_u32 v14, v15, 4, v14
    s_mov_b32 s81, 0
    s_waitcnt lgkmcnt(0)
    s_barrier        ; B2
    s_barrier        ; B3a
    s_barrier        ; B3''')
    stamp('pgs')
    A('s_cmp_eq_u32 s32, 0\ns_cbranch_scc1 L_pgather\nL_sppoll:')
    for k in range(4): A(f's_load_dwordx4 s[{40+4*k}:{43+4*k}], s[38:39], {128*k} glc')
    A(f's_add_u32 s81, s81, 1\ns_cmp_gt_u32 s81, {SPIN}\ns_cbranch_scc1 L_pgather\ns_waitcnt lgkmcnt(0)')
    regs = list(range(40, 56, 2))
    for r in regs: A(f's_xor_b64 s[{r}:{r+1}], s[{r}:{r+1}], s[82:83]')
    while len(regs) > 1:
        nr = []
        for a, b in zip(regs[0::2], regs[1::2]):
            A(f's_or_b64 s[{a}:{a+1}], s[{a}:{a+1}], s[{b}:{b+1}]'); nr.append(a)
        regs = nr
    A('s_cbranch_scc1 L_sppoll')
    stamp('ppre')
    A('L_pgather:')
    A('buffer_load_dwordx2 v[12:13], v3, s[64:67], s79 offen sc1')
    for i in range(8):
        r = 16 + i * 4
        if i == 0: A(f'buffer_load_dwordx4 v[{r}:{r+3}], v5, s[64:67], s78 offen sc1')
        else: A(f's_add_u32 s70, s78, {i * 8 * 4096}\nbuffer_load_dwordx4 v[{r}:{r+3}], v5, s[64:67], s70 offen sc1')
    def allred(reg, tmp, op):
        for n in (1, 2, 4, 8):
            A(f's_nop 1\n{op}_dpp v{reg}, v{reg}, v{reg} row_ror:{n} row_mask:0xf bank_mask:0xf')
        xg(reg, tmp, op)
    A('s_add_u32 s81, s81, 1\ns_waitcnt vmcnt(8)\nv_and_b32 v48, s77, v12\nv_and_b32 v49, s77, v13\nv_mov_b32 v50, v48')
    allred(50, 51, 'v_max_f32')
    A(f'''
    v_sub_f32 v48, v48, v50
    v_mul_f32 v48, s76, v48
    v_exp_f32 v48, v48
    s_nop 0
    ds_write_b32 v6, v48 offset:{LW}
    v_mul_f32 v49, v49, v48
    s_waitcnt lgkmcnt(0)
    ds_read_b128 v[52:55], v7 offset:{LW}
    ds_read_b128 v[56:59], v7 offset:{LW + 16}''')
    allred(49, 51, 'v_add_f32')
    A('v_rcp_f32 v49, v49\ns_waitcnt vmcnt(0) lgkmcnt(0)')
    check([12, 13] + list(range(16, 48)), 'L_pok', 'L_pgather')
    stamp('pgok'); cstamp('cpg')
    for i in range(8):
        for k in range(4):
            r = 16 + 4 * i + k
            A(f'v_and_b32 v{r}, s77, v{r}')
            A(f'v_mul_f32 v{60+k}, v52, v{r}' if i == 0 else f'v_fmac_f32 v{60+k}, v{52+i}, v{r}')
    for k in range(4): A(f'v_add_f32_dpp v{60+k}, v{60+k}, v{60+k} row_ror:8 row_mask:0xf bank_mask:0xf')
    xgn([60, 61, 62, 63], [64, 65, 66, 67], 'v_add_f32')
    for k in range(4): A(f'v_mul_f32 v{60+k}, v{60+k}, v49')
    A(f'''
    v_cvt_pk_bf16_f32 v60, v60, v61
    v_cvt_pk_bf16_f32 v61, v62, v63
    s_mov_b64 exec, 0xff
    ds_write_b64 v3, v[60:61] offset:{LOF}
    s_mov_b64 exec, -1
    s_mov_b32 s81, 0
    s_waitcnt lgkmcnt(0)
    s_barrier        ; B4''')
    stamp('b4')
    A('L_fgather:')
    for i in range(4):
        r = 16 + i * 4
        if i == 0: A(f'buffer_load_dwordx4 v[{r}:{r+3}], v14, s[64:67], s56 offen sc1')
        else: A(f's_add_u32 s70, s56, {i * 32 * 4096}\nbuffer_load_dwordx4 v[{r}:{r+3}], v14, s[64:67], s70 offen sc1')
    A(f's_add_u32 s81, s81, 1\ns_waitcnt vmcnt(0)')
    check(list(range(16, 32)), 'L_fok', 'L_fgather')
    stamp('fok'); cstamp('cf')
    for r in range(16, 32): A(f'v_and_b32 v{r}, s77, v{r}')
    for k in range(4): A(f'v_add_f32 v{16+k}, v{16+k}, v{20+k}\nv_add_f32 v{24+k}, v{24+k}, v{28+k}')
    for k in range(4): A(f'v_add_f32 v{16+k}, v{16+k}, v{24+k}')
    for n in (2, 4, 8):
        for k in range(4): A(f'v_add_f32_dpp v{16+k}, v{16+k}, v{16+k} row_ror:{n} row_mask:0xf bank_mask:0xf')
    xgn([16, 17, 18, 19], [20, 21, 22, 23], 'v_add_f32')
    A(f'''
    v_cvt_pk_bf16_f32 v16, v16, v17
    v_cvt_pk_bf16_f32 v17, v18, v19
    s_lshl_b32 s78, s32, 11
    s_lshl_b32 s79, s33, 4
    s_add_u32 s78, s78, s79
    s_mov_b64 exec, 3
    buffer_store_dwordx2 v[16:17], v3, s[68:71], s78 offen
    s_cmp_eq_u32 s2, 0
    s_cbranch_scc0 L_noep
    s_mov_b64 exec, 1
    v_mov_b32 v18, s72
    buffer_store_dword v18, off, s[64:67], 0 sc1
L_noep:
    s_mov_b64 exec, -1''')
    stamp('end')
    if opt.get('hold'):
        A(f'''
L_hold:
    s_memrealtime s[86:87]
    s_waitcnt lgkmcnt(0)
    s_sub_u32 s86, s86, s84
    s_cmp_lt_u32 s86, {opt['hold'] * 100}
    s_cbranch_scc1 L_hold''')
    A('L_fin:')
    if stamps:
        A('s_waitcnt vmcnt(0) lgkmcnt(0)')
        for k in range(16): A(f'v_mov_b32 v{16+k}, s{84+k}')
        A(f'''
    s_mul_i32 s78, s2, 5
    s_add_u32 s78, s78, s3
    s_lshl_b32 s78, s78, 6
    s_add_u32 s78, s78, {STAMP}
    v_mov_b32 v1, s78
    s_mov_b64 exec, 1''')
        for k in range(4): A(f'global_store_dwordx4 v1, v[{16+4*k}:{19+4*k}], s[28:29] offset:{16*k}')
    A('''
L_end:
    s_endpgm
.section .rodata,"a"
.p2align 6
''')
    A(kdesc(name, 256, 102, 160).replace('.end_amdhsa', '  .amdhsa_float_denorm_mode_32 3\n.end_amdhsa'))
    t = A.text()
    if opt.get('nost'):
        t = '\n'.join(('s_nop 0' if 'buffer_store' in l else l) for l in t.split('\n'))
    open(fn, 'w').write(t)

if __name__ == '__main__':
    for spec in sys.argv[1:]:
        fn, _, o = spec.partition(':')
        opt = {}
        for kv in filter(None, o.split(',')):
            k, _, v = kv.partition('=')
            try: v = int(v, 0)
            except ValueError: v = v.replace('+', ' ')
            opt[k] = v
        gen(fn, opt)
```

```python
import sys
from asmlib import *

QP   = 0x1000
PF   = 0x12000
OF   = 0x16000
POOL = 0x14000
ML   = 0x18000
PART = 0x40000
OP   = 0x240000
IN1  = 0x340000
IN2  = 0x380000
IN3  = 0x3a0000
WSSZ = 0x3c0000
STAMP = 0x10000000
LQP = 0
LQ  = 2048
LQB = 8 * 272
LML = 6656
LOF = LML + 512
LW  = LOF + 64
LF  = LW + 256
LOA = 8192
LOW = 8 * 528
PS = 1056
RW = 16384 + 17 * 1024
LR = LOA + 4 * 4352
LDSSZ = LR + 4 * RW
SPIN = 400000

def gen(fn, opt=None):
    opt = opt or {}
    stamps = bool(opt.get('st'))
    pol = opt.get('pol', 'nt')
    NS = opt.get('NS', 5)
    D = opt.get('D', 8); DL = opt.get('DL', 12); DW = opt.get('DW', 4)
    W0 = opt.get('W0', 0); W1 = opt.get('W1', min(DW, 8)); QC = opt.get('QC', 14)
    NL3 = opt.get('NL3', 4); SH3 = {1: 6, 2: 5, 4: 4, 8: 3}[NL3]
    NH = opt.get('NH', 64)
    NF = 512 - 64 * NS - NH
    A = Asm()
    name = KN + '_kernel'
    A(open('cdna_kernels/' + KN + '.s.ref').read().split('; Override launch')[0].rstrip('\n'))
    A(header([(None, 256, 320, LDSSZ)]))
    A(kstart(name))
    insync = [0]
    CS = opt.get('cs', 'start.loop.vlast.wo.end.fpre.fok.fin').split('.')
    SS = opt.get('ss', 'start.qpre.qgat.pgs.ppre.pgok.b4.cpg').split('.')
    def stamp(nm):
        L = SS if insync[0] else CS
        if opt.get('holdat') == ('s' if insync[0] else 'c') + nm:
            A('s_memrealtime s[84:85]\ns_mov_b32 s99, 1')
        if stamps and nm in L:
            k = L.index(nm)
            A(f's_memrealtime s[{84 + 2 * k}:{85 + 2 * k}]')
    def cstamp(nm, reg='s81'):
        L = SS if insync[0] else CS
        if stamps and nm in L:
            k = L.index(nm)
            A(f's_waitcnt lgkmcnt(0)\ns_mul_i32 s{84+2*k}, {reg}, 100\ns_add_u32 s{84+2*k}, s{84+2*k}, s84\ns_addc_u32 s{85+2*k}, s85, 0')
    def srd(d, lo, hi, off, size):
        if off is None:
            A(f's_mov_b32 s{d}, s{lo}\ns_mov_b32 s{d+1}, s{hi}')
        else:
            A(f's_add_u32 s{d}, s{lo}, {off}\ns_addc_u32 s{d+1}, s{hi}, 0')
        A(f's_mov_b32 s{d+2}, {size}\ns_mov_b32 s{d+3}, 0x20000')
    def pace(d): A(f's_waitcnt vmcnt({d - 1})')
    def steps(L, d):
        for pre, ld in L:
            if pre: A(pre.rstrip())
            pace(d)
            A(ld)
    def xg(reg, tmp, op):
        A(f'v_mov_b32 v{tmp}, v{reg}\ns_nop 1\nv_permlane16_swap_b32 v{reg}, v{tmp}\ns_nop 1\n{op} v{reg}, v{reg}, v{tmp}')
        A(f'v_mov_b32 v{tmp}, v{reg}\ns_nop 1\nv_permlane32_swap_b32 v{reg}, v{tmp}\ns_nop 1\n{op} v{reg}, v{reg}, v{tmp}')
    def xgn(regs, tmps, op):
        for sw in ('v_permlane16_swap_b32', 'v_permlane32_swap_b32'):
            for r, t in zip(regs, tmps): A(f'v_mov_b32 v{t}, v{r}')
            if len(regs) < 3: A('s_nop 1')
            for r, t in zip(regs, tmps): A(f'{sw} v{r}, v{t}')
            if len(regs) < 3: A('s_nop 1')
            for r, t in zip(regs, tmps): A(f'{op} v{r}, v{r}, v{t}')
    def perm(dst, src, e, njj):
        dd, hi = e >> 1, e & 1
        for jj in range(njj):
            A(f'v_perm_b32 v{dst+jj}, v{src+(2*jj+1)*4+dd}, v{src+2*jj*4+dd}, s{74 if hi else 73}')
    A(f'''
    s_cmp_ge_u32 s2, 256
    s_cbranch_scc1 L_end
    s_load_dwordx16 s[4:19], s[0:1], 0
    s_load_dwordx8 s[20:27], s[0:1], 64
    s_load_dwordx2 s[28:29], s[0:1], 96     ; ws''')
    stamp('start')
    if opt.get('hold'): A('s_memrealtime s[84:85]')
    if opt.get('holdat') and opt['holdat'] != 'cstart': A('s_mov_b32 s99, 0')
    A(f'''
    v_lshrrev_b32 v1, 6, v0
    v_and_b32 v0, 63, v0
    v_readfirstlane_b32 s3, v1
    s_lshr_b32 s30, s2, 6
    s_and_b32 s31, s2, 63                   ; chunk
    s_bfe_u32 s32, s2, 0x10003
    s_lshr_b32 s33, s2, 4
    s_lshl_b32 s33, s33, 3
    s_and_b32 s70, s2, 7
    s_add_u32 s33, s33, s70
    v_lshlrev_b32 v2, 4, v0                 ; lane*16
    v_lshrrev_b32 v8, 4, v0                 ; g
    v_and_b32 v9, 15, v0                    ; n
    s_mov_b32 s100, s2
    s_mov_b32 s101, s3
    s_cmp_eq_u32 s3, 4
    s_cbranch_scc1 L_sync''')
    A(f'''
    ; vWQ (v3) = (l>>3)*8*8192 + (l&7)*16
    v_lshrrev_b32 v3, 3, v0
    v_lshlrev_b32 v3, 16, v3
    v_and_b32 v15, 7, v0
    v_lshl_add_u32 v3, v15, 4, v3
    ; vX (v4) = (2g + (n&1))*16
    v_and_b32 v15, 1, v0
    v_lshl_add_u32 v4, v8, 1, v15
    v_lshlrev_b32 v4, 4, v4
    s_and_b32 s34, s33, 63
    s_lshr_b32 s35, s33, 6
    s_lshl_b32 s78, s34, 7                  ; cg*128 B
    s_lshl_b32 s79, s35, 22
    s_add_u32 s78, s78, s79
    s_lshl_b32 s79, s3, 20
    s_add_u32 s78, s78, s79
    s_lshl_b32 s80, s35, 10                 ; x: half*1024
    s_lshl_b32 s79, s3, 8
    s_add_u32 s80, s80, s79                 ; + wave*256
    s_sub_u32 s54, 0x800000, s78
    s_mov_b32 s55, 0x20000
    s_mov_b32 s62, 2048
    s_mov_b32 s63, 0x20000
    s_cmp_eq_u32 s32, 0
    s_waitcnt lgkmcnt(0)
    s_cselect_b32 s52, s10, s20
    s_cselect_b32 s53, s11, s21
    s_cselect_b32 s60, s4, s14
    s_cselect_b32 s61, s5, s15
    s_cselect_b32 s56, s12, s22
    s_cselect_b32 s57, s13, s23
    s_add_u32 s52, s52, s78
    s_addc_u32 s53, s53, 0''')
    WQ = 80
    for st in range(2):
        for j in range(8):
            off = (st * 64 + j) * 8192
            r = WQ + (st * 8 + j) * 4
            if off == 0:
                A(f'buffer_load_dwordx4 v[{r}:{r+3}], v3, s[52:55], 0 offen {pol}')
                A('buffer_load_dwordx4 v[64:67], v4, s[60:63], s80 offen\nbuffer_load_dwordx4 v[68:71], v4, s[60:63], s80 offen offset:128')
            else:
                A(f's_mov_b32 s70, {off}\nbuffer_load_dwordx4 v[{r}:{r+3}], v3, s[52:55], s70 offen {pol}')
    A(f'''
    s_load_dword s72, s[28:29], 0           ; epoch
    s_mov_b32 s73, 0x05040100
    s_mov_b32 s74, 0x07060302
    s_mov_b32 s75, 0x3db504f3               ; 128^-0.5
    s_mov_b32 s76, 0x3fb8aa3b               ; log2(e)
    s_mov_b32 s77, 0xffff0000
    v_lshlrev_b32 v15, 2, v8
    v_xor_b32 v15, v15, v9
    v_lshlrev_b32 v15, 4, v15
    v_lshl_add_u32 v160, v8, 8, v15
    v_xor_b32 v161, 16, v160
    v_xor_b32 v162, 32, v160
    v_xor_b32 v163, 48, v160
    v_and_b32 v15, 3, v9
    v_lshrrev_b32 v1, 2, v9
    v_lshl_add_u32 v1, v15, 2, v1
    v_lshlrev_b32 v1, 8, v1
    v_xor_b32 v15, v8, v9
    v_lshl_add_u32 v1, v15, 4, v1
    s_mul_i32 s62, s3, {RW}
    s_add_u32 s62, s62, {LR}
    v_add_u32 v164, s62, v1
    v_xor_b32 v15, 64, v1
    v_add_u32 v165, s62, v15
    v_xor_b32 v15, 128, v1
    v_add_u32 v166, s62, v15
    v_xor_b32 v15, 192, v1
    v_add_u32 v167, s62, v15
    s_lshl_b32 s78, s30, 24
    s_lshl_b32 s80, s31, 14
    s_add_u32 s80, s80, s78
    s_add_u32 s80, s80, {(65536 - 4096) * 256}
    s_lshl_b32 s81, s3, 12
    s_add_u32 s80, s80, s81''')
    srd(36, 16, 17, 's78', 0x1000000); srd(40, 18, 19, 's78', 0x1000000)
    srd(44, 6, 7, 's80', 0x1000); srd(48, 8, 9, 's80', 0x1000)
    srd(64, 28, 29, None, WSSZ)
    A(f'''
    s_lshl_b32 s78, s33, 16
    s_add_u32 s56, s56, s78
    s_addc_u32 s57, s57, 0
    s_mov_b32 s58, 0x10000
    s_mov_b32 s59, 0x20000
    s_lshl_b32 s71, s3, 13                  ; wave*8192
    s_mul_i32 s60, s31, {NS}
    s_lshl_b32 s82, s60, 15
    s_add_u32 s82, s82, s71
    s_add_u32 s60, s60, {(2 - 64 * NS) & 0xffffffff}
    s_mov_b32 s61, {NS - 3}
    s_lshl_b32 s78, s30, 10
    s_lshl_b32 s79, s3, 8
    s_add_u32 s78, s78, s79
    s_add_u32 s78, s78, {POOL}
    s_add_u32 s34, s28, s78
    s_addc_u32 s35, s29, 0
    v_and_b32 v15, 7, v9
    v_mul_u32_u24 v10, 272, v15
    v_lshl_add_u32 v10, v8, 4, v10
    v_mul_u32_u24 v11, 528, v15
    v_lshl_add_u32 v11, v8, 7, v11
    s_mul_i32 s69, s3, 4352
    s_add_u32 s69, s69, {LOA}
    v_lshrrev_b32 v15, 5, v0
    s_lshl_b32 s78, s3, 1
    v_add_u32 v15, s78, v15                 ; h
    v_mul_u32_u24 v12, 528, v15
    v_and_b32 v7, 31, v0
    v_lshl_add_u32 v12, v7, 4, v12
    v_lshlrev_b32 v13, 9, v15
    v_lshl_add_u32 v13, v7, 4, v13
    v_lshlrev_b32 v3, 5, v15
    v_lshlrev_b32 v4, 5, v0
    s_lshl_b32 s78, s3, 3
    v_add_u32 v4, s78, v4
    v_lshrrev_b32 v15, 5, v0
    v_lshlrev_b32 v14, 2, v15
    v_xor_b32 v14, v14, v7
    v_lshlrev_b32 v14, 4, v14
    v_lshl_add_u32 v14, v15, 14, v14
    s_lshl_b32 s78, s3, 9
    v_add_u32 v14, s78, v14
    s_add_u32 s63, s62, 16384''')
    def kl(lbase, loff, srdn, soff, n16):
        L = []
        for t in range(n16):
            so = soff if t == 0 else 's70'
            for jj in range(4):
                pre = ''
                if jj == 0:
                    pre = f's_add_u32 m0, {lbase}, {loff + t * 4096}\n'
                    if t == 1: pre += f's_add_u32 s70, {soff}, 4096\n'
                L.append((pre, f'buffer_load_dwordx4 v{160+jj}, {srdn}, {so} offen offset:{jj*1024} {pol} lds'))
        return L
    def vl(dst, srdn, soff, n):
        L = []
        for j in range(n):
            so = soff if j < 4 else 's70'
            r = dst + j * 4
            pre = f's_add_u32 s70, {soff}, 4096\n' if j == 4 else ''
            L.append((pre, f'buffer_load_dwordx4 v[{r}:{r+3}], v2, {srdn}, {so} offen offset:{(j%4)*1024} {pol}'))
        return L
    def wol():
        L = []
        for i in (0, 1, 4, 5, 8, 9, 12, 13, 2, 3, 6, 7, 10, 11, 14, 15):
            off = (8 * ((2 * i) & 3) + (i >> 1)) * 2048
            L.append((f's_add_u32 m0, s63, {i * PS}\ns_mov_b32 s70, {off}\n', f'buffer_load_dwordx4 v14, s[56:59], s70 offen {pol} lds'))
        return L
    def qset(st):
        T = 48
        src = WQ + st * 32
        xr = 64 + st * 4
        for e in range(9):
            if e < 8: perm(T + (e % 4) * 4, src, e, 4)
            if e >= 1:
                if e == 8: A('s_nop 1')
                t = T + ((e - 1) % 4) * 4
                d = (e - 1) * 4
                c = '0' if st == 0 else f'a[{d}:{d+3}]'
                A(f'v_mfma_f32_16x16x32_bf16 a[{d}:{d+3}], v[{t}:{t+3}], v[{xr}:{xr+3}], {c}')
    A('s_waitcnt vmcnt(8)')
    qset(0)
    LA = kl('s69', 0, 's[44:47]', '0', 1) + vl(144, 's[48:51]', '0', 4)
    steps(LA[:D], D)
    A(f's_waitcnt vmcnt({D})')
    qset(1)
    A(f'''
    v_lshlrev_b32 v15, 7, v8
    s_lshl_b32 s78, s3, 9
    v_add_u32 v15, s78, v15
    s_mov_b32 exec_lo, 0x00010001
    s_mov_b32 exec_hi, 0x00020002
    s_nop 4''')
    for e in range(8):
        A(f'ds_write_b128 v15, a[{e*4}:{3+e*4}] offset:{LQP + e*16}')
    A('s_mov_b64 exec, -1\ns_waitcnt lgkmcnt(0)\ns_add_u32 s72, s72, 1\ns_and_b32 s83, s72, 0xff\ns_barrier        ; B1')
    stamp('b1')
    L1 = kl('s62', 8192, 's[36:39]', 's82', 2)
    L1[0] = ('s_add_u32 s82, s82, 0x8000\n' + L1[0][0], L1[0][1])
    LRA = LA[D:] + kl('s62', 0, 's[36:39]', 's82', 2) + vl(16, 's[40:43]', 's82', 8) + L1 + vl(48, 's[40:43]', 's82', 8)
    steps(LRA[:QC], D)
    A('s_barrier        ; B1b')
    steps(LRA[QC:], D)
    WL = wol()
    if opt.get('woe', 0):
        if opt['woe'] == 1: A('s_cmp_eq_u32 s32, 0\ns_cbranch_scc1 L_nowo')
        steps(WL, opt.get('DE', D))
        A('L_nowo:')
    stamp('preb2')
    A('s_barrier        ; B2')
    stamp('b2')
    ACC, TT, S, U, P = 80, 112, 128, 136, 140
    Q = 64
    def qfrag(br):
        for m in range(4):
            A(f'ds_read_b128 a[{Q+m*4}:{Q+m*4+3}], v10 offset:{LQ + br*LQB + m*64}')
    def kread(addr, loff, nt):
        for m in range(4):
            for t in range(nt):
                r = t * 16 + m * 4
                A(f'ds_read_b128 a[{r}:{r+3}], v{addr+m} offset:{loff + t * 4096}')
    def qk(nt):
        k = 4 * nt
        for m in range(4):
            for t in range(nt):
                k -= 1
                A(f's_waitcnt lgkmcnt({k})')
                c = '0' if m == 0 else f'v[{S+t*4}:{S+t*4+3}]'
                A(f'v_mfma_f32_16x16x32_bf16 v[{S+t*4}:{S+t*4+3}], a[{t*16+m*4}:{t*16+m*4+3}], a[{Q+m*4}:{Q+m*4+3}], {c}')
    def roundscale(nv):
        for k in range(nv // 2): A(f'v_cvt_pk_bf16_f32 v{U+k}, v{S+2*k}, v{S+2*k+1}')
        for k in range(nv // 2):
            A(f'v_lshlrev_b32 v{S+2*k}, 16, v{U+k}\nv_and_b32 v{S+2*k+1}, s77, v{U+k}')
        for k in range(nv): A(f'v_mul_f32 v{S+k}, s75, v{S+k}')
        for k in range(nv // 2): A(f'v_cvt_pk_bf16_f32 v{U+k}, v{S+2*k}, v{S+2*k+1}')
        for k in range(nv // 2):
            A(f'v_lshlrev_b32 v{S+2*k}, 16, v{U+k}\nv_and_b32 v{S+2*k+1}, s77, v{U+k}')
    def exps(nv, first):
        A('v_mul_f32 v7, s76, v5')
        for k in range(nv): A(f'v_fma_f32 v{S+k}, v{S+k}, s76, -v7')
        for k in range(nv): A(f'v_exp_f32 v{S+k}, v{S+k}')
        A('s_nop 0')
        for k in range(nv // 2): A(f'v_cvt_pk_bf16_f32 v{P+k}, v{S+2*k}, v{S+2*k+1}')
        if first:
            A(f'v_add_f32 v6, v{S}, v{S+1}')
            for k in range(2, nv): A(f'v_add_f32 v6, v6, v{S+k}')
        else:
            for k in range(0, nv, 2): A(f'v_add_f32 v{S+k}, v{S+k}, v{S+k+1}')
            for k in range(0, nv, 4): A(f'v_add_f32 v{S+k}, v{S+k}, v{S+k+2}')
            A(f'v_add_f32 v{S}, v{S}, v{S+4}\nv_add_f32 v6, v6, v{S}')
    def pv(vb, half):
        njj = 2 if half else 4
        for e in range(9):
            if e < 8: perm(TT + (e % 4) * 4, vb, e, njj)
            if e >= 1:
                if e == 8: A('s_nop 1')
                elif half: A('s_nop 0')
                t = TT + ((e - 1) % 4) * 4
                d = ACC + (e - 1) * 4
                if half:
                    A(f'v_mfma_f32_16x16x16_bf16 v[{d}:{d+3}], v[{t}:{t+1}], v[{P}:{P+1}], 0')
                else:
                    A(f'v_mfma_f32_16x16x32_bf16 v[{d}:{d+3}], v[{t}:{t+3}], v[{P}:{P+3}], v[{d}:{d+3}]')
    def publish(br, bar):
        A(f"v_add_u32 v7, {'s62' if br else 's69'}, v11")
        xg(6, 15, 'v_add_f32')
        A('s_mov_b32 exec_lo, 0x00ff00ff\ns_mov_b32 exec_hi, 0x00ff00ff')
        for e in range(8):
            A(f'ds_write_b128 v7, v[{ACC+e*4}:{ACC+e*4+3}] offset:{e*16}')
        A(f'''
    s_mov_b64 exec, 0xff
    ds_write2_b32 v4, v5, v6 offset0:{0} offset1:{1}
    s_mov_b64 exec, -1
    s_lshl_b32 s78, s2, 12
    s_add_u32 s78, s78, {PART + br * 0x100000}
    s_lshl_b32 s79, s30, 15                 ; (kv*32 + 8w)*1024
    s_lshl_b32 s80, s3, 13
    s_add_u32 s79, s79, s80
    s_lshr_b32 s80, s31, 3
    s_lshl_b32 s80, s80, 7
    s_add_u32 s79, s79, s80
    s_and_b32 s80, s31, 7
    s_lshl_b32 s80, s80, 2
    s_add_u32 s79, s79, s80
    s_add_u32 s79, s79, {IN1 + br * 0x20000}
    v_lshlrev_b32 v9, 7, v0
    s_lshl_b32 s80, s30, 15
    s_lshl_b32 s68, s3, 13
    s_add_u32 s80, s80, s68
    s_lshr_b32 s68, s31, {SH3}
    s_lshl_b32 s68, s68, 7
    s_add_u32 s80, s80, s68
    s_and_b32 s68, s31, {(1 << SH3) - 1}
    s_add_u32 s80, s80, s68
    s_add_u32 s80, s80, {IN3}
    v_mov_b32 v15, s83
    s_movk_i32 s70, 0xff
    s_waitcnt lgkmcnt(0)
    s_barrier        ; {bar}''')
        stamp('bar' + str(br))
        A(f'ds_read_b128 v[{TT}:{TT+3}], v3\nds_read_b128 v[{TT+4}:{TT+7}], v3 offset:16')
        for w in range(4):
            o = LR + w * RW if br else LOA + w * 4352
            if o < 65536: A(f'ds_read_b128 v[{ACC+w*4}:{ACC+w*4+3}], v12 offset:{o}')
            else: A(f'v_add_u32 v7, {o}, v12\nds_read_b128 v[{ACC+w*4}:{ACC+w*4+3}], v7')
        m = [TT, TT + 2, TT + 4, TT + 6]; l = [TT + 1, TT + 3, TT + 5, TT + 7]
        R = S
        A(f'''
    s_waitcnt lgkmcnt(4)
    v_max3_f32 v{U}, v{m[0]}, v{m[1]}, v{m[2]}
    v_max_f32 v{U}, v{U}, v{m[3]}
    v_mul_f32 v7, s76, v{U}''')
        for w in range(4): A(f'v_fma_f32 v{m[w]}, v{m[w]}, s76, -v7')
        for w in range(4): A(f'v_exp_f32 v{m[w]}, v{m[w]}')
        A(f'v_mul_f32 v{U+1}, v{m[0]}, v{l[0]}')
        for w in range(1, 4): A(f'v_fmac_f32 v{U+1}, v{m[w]}, v{l[w]}')
        A(f'v_rcp_f32 v{U+2}, v{U+1}\nv_log_f32 v{U+3}, v{U+1}')
        A('s_waitcnt lgkmcnt(0)')
        for k in range(4): A(f'v_mul_f32 v{R+k}, v{m[0]}, v{ACC+k}')
        for w in range(1, 4):
            for k in range(4): A(f'v_fmac_f32 v{R+k}, v{m[w]}, v{ACC+w*4+k}')
        A(f'v_add_f32 v{U+3}, v{U+3}, v7')
        for k in range(4): A(f'v_mul_f32 v{R+k}, v{R+k}, v{U+2}')
        A(f'v_add_u32 v{U+3}, 0x80, v{U+3}')
        for r in (R, R + 1, R + 2, R + 3, U + 3): A(f'v_bfi_b32 v{r}, s70, v15, v{r}')
        A(f'''
    buffer_store_dwordx4 v[{R}:{R+3}], v13, s[64:67], s78 offen sc1
    s_mov_b32 exec_lo, 0x01010101
    s_mov_b32 exec_hi, 0x01010101
    buffer_store_dword v{U+3}, v9, s[64:67], s79 offen sc1''')
        if br == 1: A('buffer_store_byte v15, v9, s[64:67], s80 offen sc1')
        A('s_mov_b64 exec, -1')
    A(f'v_add_u32 v3, {LML}, v3\nv_add_u32 v4, {LML}, v4')
    if opt.get('noA'): A('s_barrier\ns_branch L_noA')
    qfrag(0)
    A('s_sub_u32 s78, s69, s62')
    for m in range(4): A(f'v_add_u32 v{TT+m}, s78, v{164+m}')
    A('s_waitcnt vmcnt(32)')
    kread(TT, 0, 1)
    qk(1)
    qfrag(1)
    A('s_nop 4')
    roundscale(4)
    A(f'v_max3_f32 v5, v{S}, v{S+1}, v{S+2}\nv_max_f32 v5, v5, v{S+3}')
    xg(5, 15, 'v_max_f32')
    exps(4, True)
    pv(144, True)
    publish(0, 'B3a')
    A('L_noA:')
    for k in range(32): A(f'v_mov_b32 v{ACC+k}, 0')
    A('v_mov_b32 v5, 0xff7fffff\nv_mov_b32 v6, 0\ns_mov_b32 s81, 0\ns_mov_b32 s68, 0\nv_add_u32 v3, 256, v3\nv_add_u32 v4, 256, v4')
    A(f'''s_lshl_b32 s4, s32, 16
    s_and_b32 s5, s33, 31
    s_lshl_b32 s5, s5, 11
    s_add_u32 s4, s4, s5
    s_lshl_b32 s5, s3, 9
    s_add_u32 s4, s4, s5
    s_add_u32 s4, s4, {IN2}
    s_add_u32 s4, s28, s4
    s_addc_u32 s5, s29, 0''')
    if opt.get('warm', 1):
        A('s_cmp_ge_u32 s33, 32\ns_cbranch_scc1 L_nowarm')
        for k in range(4): A(f's_load_dword s{6+k}, s[4:5], {128*k} glc')
        A('L_nowarm:')
    stamp('loop')
    if stamps: A('s_mov_b32 s80, 0')
    A('L_loop:')
    for b in range(2):
        kb, vb = b * 32, 16 + b * 32
        if stamps: A('s_add_u32 s80, s80, 1')
        A(f's_cmp_eq_u32 s68, 0\ns_waitcnt vmcnt(24)\ns_cbranch_scc1 L_w1{b}\ns_waitcnt vmcnt(12)\nL_w1{b}:')
        kread(164, b * 8192, 2)
        qk(2)
        A('s_nop 7')
        roundscale(8)
        A(f's_bitcmp0_b32 s68, {b}\ns_cbranch_scc1 L_full{b}')
        for k in range(4, 8): A(f'v_mov_b32 v{S+k}, 0xff800000')
        A(f'L_full{b}:')
        A(f'v_max3_f32 v8, v{S}, v{S+1}, v5\nv_max3_f32 v9, v{S+2}, v{S+3}, v{S+4}\nv_max3_f32 v8, v8, v{S+5}, v{S+6}\nv_max3_f32 v8, v8, v9, v{S+7}')
        xg(8, 15, 'v_max_f32')
        A(f'''
    v_cmp_gt_f32 vcc, v8, v5
    s_cbranch_vccz L_nors{b}
    v_sub_f32 v9, v5, v8
    v_mul_f32 v9, s76, v9
    v_exp_f32 v9, v9
    v_mov_b32 v5, v8
    v_mul_f32 v6, v6, v9''')
        for k in range(32): A(f'v_mul_f32 v{ACC+k}, v{ACC+k}, v9')
        A(f'L_nors{b}:')
        exps(8, False)
        A(f'''
    s_cmp_lg_u32 s81, 0
    s_cbranch_scc1 L_s1alt{b}
    s_waitcnt lgkmcnt(0)
    s_add_u32 s82, s60, {64 * NS}
    s_lshl_b32 s82, s82, 1
    s_cmp_lt_i32 s60, {NF}
    s_cbranch_scc1 L_fullc{b}
    s_add_u32 s82, s60, {128 * NS + NF}
    s_cmp_ge_u32 s82, 1024
    s_cbranch_scc1 L_s1none{b}
    s_or_b32 s68, s68, {4 | (1 << b)}
L_fullc{b}:
    s_and_b32 s78, s82, 1
    s_lshr_b32 s82, s82, 1
    s_lshl_b32 s82, s82, 3
    s_add_u32 s82, s82, s78
    s_lshl_b32 s82, s82, 12
    s_add_u32 s82, s82, s71''')
        KL = kl('s62', b * 8192, 's[36:39]', 's82', 2)
        steps(KL[:4], DL)
        A(f's_bitcmp1_b32 s68, {b}\ns_cbranch_scc1 L_s1ret{b}')
        steps(KL[4:], DL)
        A(f'L_s1ret{b}:')
        A(f's_cmp_eq_u32 s68, 0\ns_waitcnt vmcnt(16)\ns_cbranch_scc1 L_w2{b}\ns_waitcnt vmcnt(8)\nL_w2{b}:')
        pv(vb, False)
        A(f'''
    s_cmp_lg_u32 s81, 0
    s_cbranch_scc1 L_s2alt{b}
    s_add_u32 s60, s60, 1
    s_sub_u32 s61, s61, 1
    s_cbranch_scc0 L_stat{b}
    s_mov_b32 s61, 0
    s_mov_b32 s60, {1 if NS < 8 else 1024}
    {'s_atomic_add s60, s[34:35], 0 glc' if NS < 8 else ''}
L_stat{b}:''')
        VL = vl(vb, 's[40:43]', 's82', 8)
        steps(VL[:4], DL)
        A(f's_bitcmp1_b32 s68, {b}\ns_cbranch_scc1 L_s2ret{b}')
        steps(VL[4:], DL)
        if b == 0: A('L_s2ret0:')
        else: A('s_branch L_loop')
    A('.set L_s2ret1, L_loop')
    ROLE = {0: '0', 1: 's32', 2: '1'}[opt.get('woe', 0)]
    for b in range(2):
        A(f'L_s1none{b}:')
        stamp('none')
        A(f's_mov_b32 s81, 1\ns_branch L_s1ret{b}')
        A(f'L_s1alt{b}:\ns_mov_b32 s81, 2\ns_cmp_eq_u32 {ROLE}, 0\ns_cbranch_scc1 L_s1wo{b}\ns_waitcnt vmcnt(0)\ns_branch L_s1ret{b}\nL_s1wo{b}:')
        steps(WL[:W1], DW); A(f's_waitcnt vmcnt({W1})\ns_branch L_s1ret{b}')
        A(f'L_s2alt{b}:\ns_cmp_lg_u32 s81, 1\ns_cbranch_scc1 L_exit')
        A(f's_waitcnt vmcnt(4)\ns_branch L_s2ret{b}')
    A('L_exit:')
    stamp('vlast'); cstamp('ctiles', 's80')
    publish(1, 'B3')
    stamp('pub')
    if opt.get('ackst'):
        A('s_waitcnt vmcnt(0)'); stamp('ack')
    DW2 = opt.get('DW2', 8)
    A(f's_cmp_eq_u32 {ROLE}, 0\ns_cbranch_scc0 L_wo3')
    steps(WL[W1:], DW2 + 3)
    A(f'''L_wo3:
    v_lshrrev_b32 v8, 4, v0                 ; g
    v_lshlrev_b32 v7, 4, v8                 ; g*16
    v_and_b32 v9, 15, v0
    v_lshl_add_u32 v13, v9, 6, v7           ; 64n + 16g
    v_bfe_u32 v9, v0, 3, 1
    v_lshl_add_u32 v12, v8, 2, v9
    v_mul_u32_u24 v12, {PS}, v12
    v_and_b32 v9, 3, v0
    v_lshl_add_u32 v12, v9, 3, v12
    v_add_u32 v12, s63, v12
    v_bfe_u32 v9, v0, 2, 1
    v_mul_u32_u24 v3, 448, v9
    v_mul_u32_u24 v9, 576, v9
    v_add_u32 v3, v3, v12
    v_add_u32 v12, v9, v12
    s_lshl_b32 s78, s32, 19
    s_lshl_b32 s79, s33, 12
    s_add_u32 s78, s78, s79
    s_lshl_b32 s79, s3, 10
    s_add_u32 s78, s78, s79
    s_add_u32 s78, s78, {OP}
    s_movk_i32 s70, 0xff
    s_lshl_b32 s80, s32, 16
    s_lshl_b32 s79, s3, 14
    s_add_u32 s80, s80, s79
    s_lshr_b32 s79, s33, 3
    s_lshl_b32 s79, s79, 7
    s_add_u32 s80, s80, s79
    s_and_b32 s79, s33, 7
    s_add_u32 s80, s80, s79
    s_add_u32 s80, s80, {IN2}
    v_lshlrev_b32 v4, 11, v0
    s_mul_i32 s36, s83, 0x01010101
    s_mov_b32 s37, s36
    s_lshl_b32 s48, s32, 19
    s_lshl_b32 s49, s3, 17
    s_add_u32 s48, s48, s49
    s_lshl_b32 s49, s33, 7
    s_add_u32 s48, s48, s49
    s_add_u32 s48, s48, {OP}
    s_movk_i32 s49, 0xff00
    v_lshrrev_b32 v14, 3, v0
    v_lshlrev_b32 v14, 12, v14
    v_and_b32 v9, 7, v0
    v_lshl_add_u32 v14, v9, 4, v14
    s_lshl_b32 s79, s3, 7
    v_add_u32 v11, s79, v2
    v_lshlrev_b32 v10, 3, v0
    v_lshlrev_b32 v1, 2, v0
    s_mov_b32 s52, s24
    s_mov_b32 s53, s25
    s_movk_i32 s54, 0x1000
    s_mov_b32 s55, 0x20000
    s_lshl_b32 s50, s32, 11
    s_lshl_b32 s51, s33, 6
    s_add_u32 s50, s50, s51''')
    for k in range(64): A(f'v_accvgpr_write_b32 a{k}, 0')
    for h in range(2):
        A(f's_cmp_eq_u32 {ROLE}, 0\ns_cbranch_scc0 L_wo4{h}\ns_waitcnt vmcnt({8 - 8 * h})\nL_wo4{h}:')
        if h: stamp('wo')
        for x in range(16):
            r = 16 + x * 4 + h * 2
            A(f'ds_read_b64_tr_b16 v[{r}:{r+1}], v{3 if x & 2 else 12} offset:{x * 32 + h * 2 * PS}')
    A('s_mov_b32 exec_lo, 0x00010001\ns_mov_b32 exec_hi, 0x00010001\ns_waitcnt lgkmcnt(0)\ns_barrier        ; B4')
    for x in range(16):
        A(f'ds_read_b128 a[{x*4}:{x*4+3}], v7 offset:{LOF}')
        A('s_lshl_b64 exec, exec, 1' if x < 15 else 's_mov_b64 exec, -1')
    for x in range(16):
        A(f's_waitcnt lgkmcnt({15 - x})')
        if x == 0: stamp('b4')
        c = '0' if x < 2 else f'v[{80 + (x & 1) * 4}:{83 + (x & 1) * 4}]'
        A(f'v_mfma_f32_16x16x32_bf16 v[{80 + (x & 1) * 4}:{83 + (x & 1) * 4}], v[{16+x*4}:{19+x*4}], a[{x*4}:{x*4+3}], {c}')
    A('s_nop 7')
    for k in range(4): A(f'v_add_f32 v{80+k}, v{80+k}, v{84+k}')
    for k in range(4): A(f'v_bfi_b32 v{80+k}, s70, v15, v{80+k}')
    A('''buffer_store_dwordx4 v[80:83], v13, s[64:67], s78 offen sc1
    s_mov_b64 exec, 0xff
    buffer_store_byte v15, v4, s[64:67], s80 offen sc1
    s_mov_b64 exec, -1''')
    stamp('end')
    if opt.get('ackst'):
        A('s_waitcnt vmcnt(0)'); stamp('ack2')
    if opt.get('nosync'): A('s_branch L_fin')
    A(f'''s_cmp_ge_u32 s33, 32
    s_cbranch_scc1 L_fin
    s_mov_b32 s81, 0
L_ofpoll:
    s_load_dwordx2 s[40:41], s[4:5], 0 glc
    s_load_dwordx2 s[42:43], s[4:5], 128 glc
    s_load_dwordx2 s[44:45], s[4:5], 256 glc
    s_load_dwordx2 s[46:47], s[4:5], 384 glc
    s_add_u32 s81, s81, 1
    s_cmp_gt_u32 s81, {SPIN}
    s_cbranch_scc1 L_fgather
    s_waitcnt lgkmcnt(0)
    s_xor_b64 s[40:41], s[40:41], s[36:37]
    s_xor_b64 s[42:43], s[42:43], s[36:37]
    s_xor_b64 s[44:45], s[44:45], s[36:37]
    s_xor_b64 s[46:47], s[46:47], s[36:37]
    s_or_b64 s[40:41], s[40:41], s[42:43]
    s_or_b64 s[44:45], s[44:45], s[46:47]
    s_or_b64 s[40:41], s[40:41], s[44:45]
    s_cbranch_scc1 L_ofpoll''')
    stamp('fpre')
    A('L_fgather:')
    for i in range(4):
        r = 16 + i * 4
        if i == 0: A(f'buffer_load_dwordx4 v[{r}:{r+3}], v14, s[64:67], s48 offen sc1')
        else: A(f's_add_u32 s79, s48, {i * 8 * 4096}\nbuffer_load_dwordx4 v[{r}:{r+3}], v14, s[64:67], s79 offen sc1')
    A(f's_add_u32 s81, s81, 1\ns_waitcnt vmcnt(0)')
    A('v_xor_b32 v8, s83, v16\nv_xor_b32 v9, s83, v17')
    for k, r in enumerate(range(18, 32)): A(f'v_bitop3_b32 v{8 + (k & 1)}, v{8 + (k & 1)}, v{r}, s83 bitop3:0xf6')
    for r in range(16, 32): A(f'v_and_b32 v{r}, s49, v{r}')
    A(f'''v_or_b32 v8, v8, v9
    v_and_b32 v8, s70, v8
    v_cmp_ne_u32 vcc, 0, v8
    s_cbranch_vccz L_fok
    s_cmp_gt_u32 s81, {SPIN}
    s_cbranch_scc0 L_fgather
L_fok:''')
    stamp('fok')
    A('v_pk_add_f32 v[16:17], v[16:17], v[20:21]\nv_pk_add_f32 v[18:19], v[18:19], v[22:23]\nv_pk_add_f32 v[24:25], v[24:25], v[28:29]\nv_pk_add_f32 v[26:27], v[26:27], v[30:31]')
    A('v_pk_add_f32 v[16:17], v[16:17], v[24:25]\nv_pk_add_f32 v[18:19], v[18:19], v[26:27]\ns_nop 1')
    for k in range(4): A(f'v_add_f32_dpp v{16+k}, v{16+k}, v{16+k} row_ror:8 row_mask:0xf bank_mask:0xf')
    xgn([16, 17, 18, 19], [20, 21, 22, 23], 'v_add_f32')
    A(f'''s_mov_b64 exec, 0xff
    ds_write_b128 v11, v[16:19] offset:{LF}
    s_mov_b64 exec, 0xffff
    s_waitcnt lgkmcnt(0)
    s_barrier        ; B5
    s_cmp_eq_u32 s3, 0
    s_cbranch_scc0 L_fin
    ds_read_b64 v[16:17], v10 offset:{LF}
    ds_read_b64 v[18:19], v10 offset:{LF + 128}
    ds_read_b64 v[20:21], v10 offset:{LF + 256}
    ds_read_b64 v[22:23], v10 offset:{LF + 384}
    v_mov_b32 v24, s72
    s_waitcnt lgkmcnt(2)
    v_pk_add_f32 v[16:17], v[16:17], v[18:19]
    s_waitcnt lgkmcnt(0)
    v_pk_add_f32 v[20:21], v[20:21], v[22:23]
    s_cmp_eq_u32 s2, 0
    v_pk_add_f32 v[16:17], v[16:17], v[20:21]
    s_nop 0
    v_cvt_pk_bf16_f32 v16, v16, v17
    buffer_store_dword v16, v1, s[52:55], s50 offen {opt.get('outp', '')}
    s_cbranch_scc0 L_noep
    s_mov_b64 exec, 1
    buffer_store_dword v24, off, s[64:67], 0 sc1
L_noep:''')
    stamp('fin')
    A('s_branch L_fin')
    A('L_sync:')
    insync[0] = 1
    A(f"s_setprio {opt.get('prio', 3)}")
    if opt.get('nosync'):
        A('s_waitcnt lgkmcnt(0)\n' + 's_barrier\n' * 6 + 's_branch L_fin')
    A('s_waitcnt lgkmcnt(0)\ns_load_dword s72, s[28:29], 0')
    srd(64, 28, 29, None, WSSZ)
    A(f'''
    s_mov_b32 s76, 0x3fb8aa3b               ; log2(e)
    s_movk_i32 s77, 0xff00                  ; 0xffffff00
    s_movk_i32 s75, 0xff
    s_and_b32 s36, s33, 0x4f
    s_xor_b32 s37, s32, 1
    s_or_b32 s36, s36, s37
    s_cbranch_scc1 L_nopool
    s_bfe_u32 s36, s33, 0x20004
    s_lshl_b32 s36, s36, 10
    s_add_u32 s36, s36, {POOL}
    v_lshlrev_b32 v3, 8, v0
    v_mov_b32 v4, 0
    s_mov_b64 exec, 0xf
    buffer_store_dword v4, v3, s[64:67], s36 offen sc1
    s_mov_b64 exec, -1
    s_waitcnt vmcnt(0)
L_nopool:
    v_lshrrev_b32 v3, 5, v0
    v_lshlrev_b32 v3, 5, v3
    v_and_b32 v15, 3, v0
    v_lshl_add_u32 v3, v15, 3, v3
    v_bfe_u32 v15, v0, 2, 3
    v_add_u32 v3, v3, v15
    v_lshlrev_b32 v3, 2, v3
    v_lshlrev_b32 v4, 2, v0                 ; lane*4
    v_lshrrev_b32 v5, 5, v0
    v_mul_u32_u24 v5, 272, v5
    v_and_b32 v15, 31, v0
    v_lshl_add_u32 v5, v15, 3, v5
    s_and_b32 s34, s33, 63
    s_lshr_b32 s35, s33, 6
    s_lshl_b32 s78, s32, 15
    s_lshl_b32 s79, s35, 14
    s_add_u32 s78, s78, s79
    s_lshl_b32 s79, s34, 8
    s_add_u32 s78, s78, s79
    s_add_u32 s78, s78, {QP}
    s_lshl_b32 s80, s30, 12
    s_add_u32 s80, s80, {QP}
    s_waitcnt lgkmcnt(0)
    s_add_u32 s72, s72, 1
    s_and_b32 s74, s72, 0xff
    s_mul_i32 s82, s74, 0x01010101
    s_mov_b32 s83, s82
    v_mov_b32 v1, s74
    s_barrier        ; B1''')
    stamp('b1')
    for k in range(8): A(f'ds_read_b32 v{16+k}, v4 offset:{LQP + k*256}')
    A(f'''
    s_waitcnt lgkmcnt(0)
    v_add_f32 v16, v16, v17
    v_add_f32 v18, v18, v19
    v_add_f32 v20, v20, v21
    v_add_f32 v22, v22, v23
    v_add_f32 v16, v16, v18
    v_add_f32 v20, v20, v22
    v_add_f32 v24, v16, v20
    v_add_u32 v24, 0x80, v24
    v_bfi_b32 v24, s75, v1, v24
    buffer_store_dword v24, v3, s[64:67], s78 offen sc1
    s_mov_b32 s81, 0
    s_barrier        ; B1b''')
    stamp('qpre')
    def check(regs, ok, retry, cnt='s81'):
        A(f'v_xor_b32 v10, s74, v{regs[0]}\nv_xor_b32 v11, s74, v{regs[1]}')
        for k, r in enumerate(regs[2:]): A(f'v_bitop3_b32 v{10 + (k & 1)}, v{10 + (k & 1)}, v{r}, s74 bitop3:0xf6')
        A(f'''v_or_b32 v10, v10, v11
    v_and_b32 v10, s75, v10
    v_cmp_ne_u32 vcc, 0, v10
    s_cbranch_vccz {ok}
    s_cmp_gt_u32 {cnt}, {SPIN}
    s_cbranch_scc0 {retry}
{ok}:''')
    if opt.get('noqg'): A('s_branch L_qok')
    A('L_qgather:')
    for br in range(2):
        for half in range(2):
            A(f's_add_u32 s70, s80, {br * 0x8000 + half * 0x4000}')
            for i in range(4):
                r = 16 + (br * 8 + half * 4 + i) * 4
                A(f'buffer_load_dwordx4 v[{r}:{r+3}], v2, s[64:67], s70 offen offset:{i*1024} sc1')
    A(f's_add_u32 s81, s81, 1\ns_waitcnt vmcnt(0)')
    check(list(range(16, 80)), 'L_qok', 'L_qgather')
    stamp('qgat'); cstamp('cqgat')
    for br in range(2):
        for i in range(4):
            r = 16 + (br * 8 + i) * 4
            for k in range(4): A(f'v_and_b32 v{r+k}, s77, v{r+k}\nv_and_b32 v{r+16+k}, s77, v{r+16+k}\nv_add_f32 v{r+k}, v{r+k}, v{r+16+k}')
            A(f'v_cvt_pk_bf16_f32 v{r}, v{r}, v{r+1}\nv_cvt_pk_bf16_f32 v{r+1}, v{r+2}, v{r+3}')
            A(f'ds_write_b64 v5, v[{r}:{r+1}] offset:{LQ + br*LQB + i*2*272}')
    A(f'''
    s_lshr_b32 s34, s33, 2
    s_and_b32 s35, s33, 3
    s_lshl_b32 s78, s32, 20
    s_lshr_b32 s79, s34, 3
    s_lshl_b32 s79, s79, 18
    s_add_u32 s78, s78, s79
    s_and_b32 s79, s34, 7
    s_lshl_b32 s79, s79, 9
    s_add_u32 s78, s78, s79
    s_lshl_b32 s79, s35, 7
    s_add_u32 s78, s78, s79
    s_add_u32 s78, s78, {PART}
    s_lshl_b32 s79, s32, 17
    s_lshl_b32 s80, s33, 10
    s_add_u32 s79, s79, s80
    s_add_u32 s79, s79, {IN1}
    s_add_u32 s80, s80, {IN3}
    s_add_u32 s38, s28, s80
    s_addc_u32 s39, s29, 0
    v_lshrrev_b32 v15, 3, v0
    v_lshlrev_b32 v5, 12, v15
    v_and_b32 v6, 7, v0
    v_lshl_add_u32 v5, v6, 4, v5            ; (l>>3)*4096 + (l&7)*16
    v_lshlrev_b32 v3, 3, v0                 ; lane*8
    v_lshlrev_b32 v6, 5, v6
    v_lshl_add_u32 v6, v15, 2, v6
    v_lshlrev_b32 v7, 5, v15
    v_lshlrev_b32 v14, 7, v15
    v_and_b32 v13, 7, v0
    v_lshl_add_u32 v14, v13, 2, v14         ; (l>>3)*128 + (l&7)*4
    s_mov_b32 s81, 0
    s_waitcnt lgkmcnt(0)
    s_barrier        ; B2''')
    if opt.get('warm', 1):
        A('s_cmp_eq_u32 s32, 0\ns_cbranch_scc1 L_nowarm1')
        for k in range(NL3): A(f's_load_dword s{40+k}, s[38:39], {128*k} glc')
        A('s_add_u32 s36, s28, s79\ns_addc_u32 s37, s29, 0')
        for k in range(8): A(f's_load_dword s{48+k}, s[36:37], {128*k} glc')
        A('L_nowarm1:')
    A('''s_mov_b32 s73, 0
    s_barrier        ; B3a
    s_waitcnt lgkmcnt(0)
    s_barrier        ; B3''')
    stamp('pgs')
    A('s_cmp_eq_u32 s32, 0\ns_cbranch_scc1 L_pgather\nL_sppoll:')
    nd = 16 // NL3
    for k in range(NL3): A(f's_load_dwordx{nd} s[{40+k*nd}:{40+k*nd+nd-1}], s[38:39], {128*k} glc')
    A(f's_add_u32 s73, s73, 1\ns_cmp_gt_u32 s73, {SPIN}\ns_cbranch_scc1 L_pgather\ns_waitcnt lgkmcnt(0)')
    regs = list(range(40, 56, 2))
    for r in regs: A(f's_xor_b64 s[{r}:{r+1}], s[{r}:{r+1}], s[82:83]')
    while len(regs) > 1:
        nr = []
        for a, b in zip(regs[0::2], regs[1::2]):
            A(f's_or_b64 s[{a}:{a+1}], s[{a}:{a+1}], s[{b}:{b+1}]'); nr.append(a)
        regs = nr
    A('s_cbranch_scc1 L_sppoll')
    stamp('ppre')
    A('L_pgather:')
    A('buffer_load_dword v12, v14, s[64:67], s79 offen sc1')
    for i in range(8):
        r = 16 + i * 4
        if i == 0: A(f'buffer_load_dwordx4 v[{r}:{r+3}], v5, s[64:67], s78 offen sc1')
        else: A(f's_add_u32 s70, s78, {i * 8 * 4096}\nbuffer_load_dwordx4 v[{r}:{r+3}], v5, s[64:67], s70 offen sc1')
    def allred(reg, tmp, op):
        for n in (1, 2, 4, 8):
            A(f's_nop 1\n{op}_dpp v{reg}, v{reg}, v{reg} row_ror:{n} row_mask:0xf bank_mask:0xf')
        xg(reg, tmp, op)
    A('s_add_u32 s73, s73, 1\ns_waitcnt vmcnt(8)\nv_and_b32 v48, s77, v12\nv_mov_b32 v50, v48')
    allred(50, 51, 'v_max_f32')
    A(f'''
    v_sub_f32 v48, v48, v50
    v_exp_f32 v49, v48
    s_nop 0
    ds_write_b32 v6, v49 offset:{LW}
    s_waitcnt lgkmcnt(0)
    ds_read_b128 v[52:55], v7 offset:{LW}
    ds_read_b128 v[56:59], v7 offset:{LW + 16}''')
    allred(49, 51, 'v_add_f32')
    A('v_rcp_f32 v49, v49\ns_waitcnt vmcnt(0) lgkmcnt(0)')
    check([12] + list(range(16, 48)), 'L_pok', 'L_pgather', 's73')
    stamp('pgok'); cstamp('cpg', 's73')
    for i in range(8):
        for k in range(4):
            r = 16 + 4 * i + k
            A(f'v_and_b32 v{r}, s77, v{r}')
            A(f'v_mul_f32 v{60+k}, v52, v{r}' if i == 0 else f'v_fmac_f32 v{60+k}, v{52+i}, v{r}')
    for k in range(4): A(f'v_add_f32_dpp v{60+k}, v{60+k}, v{60+k} row_ror:8 row_mask:0xf bank_mask:0xf')
    xgn([60, 61, 62, 63], [64, 65, 66, 67], 'v_add_f32')
    for k in range(4): A(f'v_mul_f32 v{60+k}, v{60+k}, v49')
    A(f'''
    v_cvt_pk_bf16_f32 v60, v60, v61
    v_cvt_pk_bf16_f32 v61, v62, v63
    s_mov_b64 exec, 0xff
    ds_write_b64 v3, v[60:61] offset:{LOF}
    s_mov_b64 exec, -1
    s_mov_b32 s81, 0
    s_waitcnt lgkmcnt(0)
    s_barrier        ; B4''')
    stamp('b4')
    if opt.get('hold'):
        A(f'''
L_hold:
    s_memrealtime s[86:87]
    s_waitcnt lgkmcnt(0)
    s_sub_u32 s86, s86, s84
    s_cmp_lt_u32 s86, {opt['hold'] * 100}
    s_cbranch_scc1 L_hold''')
    A('L_fin:')
    if opt.get('holdat'):
        A('''s_cmp_eq_u32 s99, 0
    s_cbranch_scc1 L_nohold
L_hold2:
    s_memrealtime s[86:87]
    s_waitcnt lgkmcnt(0)
    s_sub_u32 s86, s86, s84
    s_cmp_lt_u32 s86, 3000
    s_cbranch_scc1 L_hold2
L_nohold:''')
    if stamps:
        A('s_waitcnt vmcnt(0) lgkmcnt(0)')
        for k in range(16): A(f'v_mov_b32 v{16+k}, s{84+k}')
        A(f'''
    s_mul_i32 s78, s100, 5
    s_add_u32 s78, s78, s101
    s_lshl_b32 s78, s78, 6
    s_add_u32 s78, s78, {STAMP}
    v_mov_b32 v1, s78
    s_mov_b64 exec, 1''')
        for k in range(4): A(f'global_store_dwordx4 v1, v[{16+4*k}:{19+4*k}], s[28:29] offset:{16*k}')
    A('''
L_end:
    s_endpgm
.section .rodata,"a"
.p2align 6
''')
    A(kdesc(name, 248, 102, 168).replace('.end_amdhsa', '  .amdhsa_float_denorm_mode_32 3\n.end_amdhsa'))
    t = A.text()
    if opt.get('nost'):
        t = '\n'.join(('s_nop 0' if 'buffer_store' in l else l) for l in t.split('\n'))
    open(fn, 'w').write(t)

if __name__ == '__main__':
    for spec in sys.argv[1:]:
        fn, _, o = spec.partition(':')
        opt = {}
        for kv in filter(None, o.split(',')):
            k, _, v = kv.partition('=')
            try: v = int(v, 0)
            except ValueError: v = v.replace('+', ' ')
            opt[k] = v
        gen(fn, opt)
```

```python
import sys
from asmlib import *

QP   = 0x1000
POOL = 0x14000
PART = 0x40000
OP   = 0x240000
IN1  = 0x340000
IN3  = 0x350000
IN2  = 0x360000
WSSZ = 0x380000
STAMP = 0x10000000
LK  = 0
LWO = 65536
LOA = LWO + 67072
LQP = LOA + 4 * 4352
LQ  = LQP + 2048
LQB = 8 * 272
LML = LQ + 2 * LQB
LW  = LML + 512
LF  = LW + 256
LOT = LF + 512
LCN = LOT + 64
LDSSZ = LCN + 16
SPIN = 400000

def gen(fn, opt=None):
    opt = opt or {}
    stamps = bool(opt.get('st'))
    pol = opt.get('pol', 'nt')
    NS = opt.get('NS', 6); NH = opt.get('NH', 32); NF = 512 - 64 * NS - NH
    D = opt.get('D', 8); DL = opt.get('DL', 12); DW = opt.get('DW', 4); DW2 = opt.get('DW2', 6)
    W1 = opt.get('W1', DW); QC = opt.get('QC', 14); ROT = opt.get('rot', 22); AGM = opt.get('agm', 0)
    H2 = opt.get('h2', 'i')
    A = Asm()
    name = KN + '_kernel'
    A(open('cdna_kernels/' + KN + '.s.ref').read().split('; Override launch')[0].rstrip('\n'))
    A(header([(None, 256, 320, LDSSZ)]))
    A(kstart(name))
    insync = [0]
    CS = opt.get('cs', 'start.loop.vlast.wo.end.fpre.fok.fin').split('.')
    SS = opt.get('ss', 'start.qpre.qgat.pgs.ppre.pgok.b4.cpg').split('.')
    def stamp(nm):
        L = SS if insync[0] else CS
        if opt.get('holdat') == ('s' if insync[0] else 'c') + nm:
            A('s_memrealtime s[84:85]\ns_mov_b32 s99, 1')
        if stamps and nm in L:
            k = L.index(nm)
            A(f's_memrealtime s[{84 + 2 * k}:{85 + 2 * k}]')
    def cstamp(nm, reg):
        L = SS if insync[0] else CS
        if stamps and nm in L:
            k = L.index(nm)
            A(f's_waitcnt lgkmcnt(0)\ns_mul_i32 s{84+2*k}, {reg}, 100\ns_add_u32 s{84+2*k}, s{84+2*k}, s84\ns_addc_u32 s{85+2*k}, s85, 0')
    def srd(d, lo, hi, off, size):
        if off is None:
            A(f's_mov_b32 s{d}, s{lo}\ns_mov_b32 s{d+1}, s{hi}')
        else:
            A(f's_add_u32 s{d}, s{lo}, {off}\ns_addc_u32 s{d+1}, s{hi}, 0')
        A(f's_mov_b32 s{d+2}, {size}\ns_mov_b32 s{d+3}, 0x20000')
    def lin(dst, const, terms, tmp='s70'):
        first = True
        for src, shr, mask, shl in terms:
            t = dst if first else tmp
            cur = src
            if shr: A(f's_lshr_b32 {t}, {cur}, {shr}'); cur = t
            if mask is not None: A(f's_and_b32 {t}, {cur}, {mask}'); cur = t
            if shl: A(f's_lshl_b32 {t}, {cur}, {shl}'); cur = t
            if first:
                if cur != dst: A(f's_mov_b32 {dst}, {cur}')
            else: A(f's_add_u32 {dst}, {dst}, {cur}')
            first = False
        if const: A(f's_add_u32 {dst}, {dst}, {const}')
    def steps(L, d):
        for pre, ld in L:
            if pre: A(pre.rstrip())
            A(f's_waitcnt vmcnt({d - 1})')
            A(ld)
    def xg(reg, tmp, op):
        A(f'v_mov_b32 v{tmp}, v{reg}\ns_nop 1\nv_permlane16_swap_b32 v{reg}, v{tmp}\ns_nop 1\n{op} v{reg}, v{reg}, v{tmp}')
        A(f'v_mov_b32 v{tmp}, v{reg}\ns_nop 1\nv_permlane32_swap_b32 v{reg}, v{tmp}\ns_nop 1\n{op} v{reg}, v{reg}, v{tmp}')
    def xg4(regs, tmps, op):
        for sw in ('v_permlane16_swap_b32', 'v_permlane32_swap_b32'):
            for r, t in zip(regs, tmps): A(f'v_mov_b32 v{t}, v{r}')
            for r, t in zip(regs, tmps): A(f'{sw} v{r}, v{t}')
            for r, t in zip(regs, tmps): A(f'{op} v{r}, v{r}, v{t}')
    def perm(dst, src, e, njj):
        dd, hi = e >> 1, e & 1
        for jj in range(njj):
            A(f'v_perm_b32 v{dst+jj}, v{src+(2*jj+1)*4+dd}, v{src+2*jj*4+dd}, s{74 if hi else 73}')
    A(f'''
    s_cmp_ge_u32 s2, 256
    s_cbranch_scc1 L_end
    s_load_dwordx16 s[4:19], s[0:1], 0
    s_load_dwordx8 s[20:27], s[0:1], 64
    s_load_dwordx2 s[28:29], s[0:1], 96     ; ws''')
    stamp('start')
    if opt.get('holdat') and opt['holdat'] != 'cstart': A('s_mov_b32 s99, 0')
    A(f'''
    v_lshrrev_b32 v1, 6, v0
    v_and_b32 v0, 63, v0
    v_readfirstlane_b32 s3, v1
    s_lshr_b32 s30, s2, 6
    s_and_b32 s31, s2, 63
    s_bfe_u32 s32, s2, 0x10003
    s_lshr_b32 s33, s2, 4
    s_lshl_b32 s33, s33, 3
    s_and_b32 s70, s2, 7
    s_add_u32 s33, s33, s70
    v_lshlrev_b32 v2, 4, v0                 ; lane*16
    v_lshrrev_b32 v8, 4, v0                 ; g
    v_and_b32 v9, 15, v0                    ; n''')
    if stamps: A('s_mov_b32 s100, s2\ns_mov_b32 s101, s3')
    A('s_cmp_eq_u32 s3, 4\ns_cbranch_scc1 L_sync')
    A(f'''
    v_lshrrev_b32 v3, 3, v0
    v_lshlrev_b32 v3, 16, v3
    v_and_b32 v15, 7, v0
    v_lshl_add_u32 v3, v15, 4, v3
    v_and_b32 v15, 1, v0
    v_lshl_add_u32 v4, v8, 1, v15
    v_lshlrev_b32 v4, 4, v4''')
    lin('s78', 0, [('s33', 0, 63, 7), ('s33', 6, None, 22), ('s3', 0, None, 20)])
    lin('s80', 0, [('s33', 6, None, 10), ('s3', 0, None, 8)])
    A(f'''
    s_sub_u32 s54, 0x800000, s78
    s_mov_b32 s55, 0x20000
    s_mov_b32 s62, 2048
    s_mov_b32 s63, 0x20000
    s_cmp_eq_u32 s32, 0
    s_waitcnt lgkmcnt(0)
    s_cselect_b32 s52, s10, s20
    s_cselect_b32 s53, s11, s21
    s_cselect_b32 s60, s4, s14
    s_cselect_b32 s61, s5, s15
    s_cselect_b32 s56, s12, s22
    s_cselect_b32 s57, s13, s23
    s_add_u32 s52, s52, s78
    s_addc_u32 s53, s53, 0''')
    WQ = 80
    for st in range(2):
        for j in range(8):
            off = (st * 64 + j) * 8192
            r = WQ + (st * 8 + j) * 4
            if off == 0:
                A(f'buffer_load_dwordx4 v[{r}:{r+3}], v3, s[52:55], 0 offen {pol}')
                A('buffer_load_dwordx4 v[64:67], v4, s[60:63], s80 offen\nbuffer_load_dwordx4 v[68:71], v4, s[60:63], s80 offen offset:128')
            else:
                A(f's_mov_b32 s70, {off}\nbuffer_load_dwordx4 v[{r}:{r+3}], v3, s[52:55], s70 offen {pol}')
    A(f'''
    s_load_dword s72, s[28:29], 0           ; epoch
    s_mov_b32 s73, 0x05040100
    s_mov_b32 s74, 0x07060302
    s_mov_b32 s75, 0x3db504f3               ; 128^-0.5
    s_mov_b32 s76, 0x3fb8aa3b               ; log2(e)
    s_mov_b32 s77, 0xffff0000
    s_lshl_b32 s78, s30, 24''')
    lin('s80', (65536 - 4096) * 256, [('s30', 0, None, 24), ('s31', 0, None, 14), ('s3', 0, None, 12)])
    srd(36, 16, 17, 's78', 0x1000000); srd(40, 18, 19, 's78', 0x1000000)
    srd(44, 6, 7, 's80', 0x1000); srd(48, 8, 9, 's80', 0x1000)
    srd(64, 28, 29, None, WSSZ)
    lin('s78', 0, [('s33', 0, None, 16), ('s3', 0, None, 14)])
    A('s_add_u32 s56, s56, s78\ns_addc_u32 s57, s57, 0\ns_mov_b32 s58, 0x4000\ns_mov_b32 s59, 0x20000')
    lin('s71', 0, [('s3', 0, None, 13), ('s30', 0, None, ROT)])
    A(f'''
    s_lshl_b32 s82, s31, 15
    s_add_u32 s82, s82, s71
    s_and_b32 s82, s82, 0xffffff
    s_add_u32 s60, s31, {(128 - 64 * NS) & 0xffffffff}
    s_mov_b32 s61, {NS - 3}
    s_lshl_b32 s62, s3, 14
    s_mul_i32 s63, s3, 2080
    s_add_u32 s63, s63, {LWO}
    s_mul_i32 s69, s3, 4352
    s_add_u32 s69, s69, {LOA}''')
    lin('s78', POOL, [('s30', 0, None, 10), ('s3', 0, None, 8)])
    A('s_add_u32 s34, s28, s78\ns_addc_u32 s35, s29, 0')
    lin('s78', IN2, [('s32', 0, None, 16), ('s33', 0, 31 if H2 == 'i' else 24, 11), ('s3', 0, None, 9)])
    A('s_add_u32 s4, s28, s78\ns_addc_u32 s5, s29, 0')
    lin('s12', PART, [('s2', 0, None, 12)])
    lin('s13', IN1, [('s30', 0, None, 13), ('s3', 0, None, 11), ('s31', 3, None, 7), ('s31', 0, 7, 2)])
    lin('s14', IN3, [('s30', 0, None, 13), ('s3', 0, None, 11), ('s31', 4, None, 7), ('s31', 0, 15, 0)])
    lin('s15', OP, [('s32', 0, None, 19), ('s33', 0, None, 12), ('s3', 0, None, 10)])
    lin('s16', IN2, [('s32', 0, None, 16), ('s3', 0, None, 14), ('s33', 3, None, 7), ('s33', 0, 7, 0)])
    lin('s17', OP, [('s32', 0, None, 19), ('s3', 0, None, 17), ('s33', 0, None, 7)])
    lin('s18', 0, [('s32', 0, None, 11), ('s33', 0, None, 6)])
    A(f'''
    s_movk_i32 s19, 0xff
    s_movk_i32 s20, 0xff00
    v_lshlrev_b32 v15, 2, v8
    v_xor_b32 v15, v15, v9
    v_lshlrev_b32 v15, 4, v15
    v_lshl_add_u32 v160, v8, 8, v15
    v_xor_b32 v161, 16, v160
    v_xor_b32 v162, 32, v160
    v_xor_b32 v163, 48, v160
    v_and_b32 v15, 3, v9
    v_lshrrev_b32 v1, 2, v9
    v_lshl_add_u32 v1, v15, 2, v1
    v_lshlrev_b32 v1, 8, v1
    v_xor_b32 v15, v8, v9
    v_lshl_add_u32 v1, v15, 4, v1
    v_add_u32 v164, s62, v1
    v_xor_b32 v165, 64, v164
    v_xor_b32 v166, 128, v164
    v_xor_b32 v167, 192, v164
    v_and_b32 v15, 7, v9
    v_mul_u32_u24 v10, 272, v15
    v_lshl_add_u32 v10, v8, 4, v10
    v_add_u32 v10, {LQ}, v10
    v_mul_u32_u24 v11, 528, v15
    v_lshl_add_u32 v11, v8, 7, v11
    v_add_u32 v168, s62, v11
    v_add_u32 v11, s69, v11
    v_lshrrev_b32 v15, 5, v0
    s_lshl_b32 s78, s3, 1
    v_add_u32 v15, s78, v15
    v_mul_u32_u24 v12, 528, v15
    v_and_b32 v7, 31, v0
    v_lshl_add_u32 v12, v7, 4, v12
    v_lshlrev_b32 v13, 9, v15
    v_lshl_add_u32 v13, v7, 4, v13
    v_lshlrev_b32 v3, 5, v15
    v_add_u32 v3, {LML}, v3
    v_lshlrev_b32 v169, 5, v0
    s_lshl_b32 s78, s3, 3
    s_add_u32 s78, s78, {LML}
    v_add_u32 v4, s78, v169
    v_mul_u32_u24 v170, 16768, v8
    v_bfe_u32 v15, v0, 2, 2
    v_mul_u32_u24 v15, 2080, v15
    v_add_u32 v170, v170, v15
    v_and_b32 v15, 3, v0
    v_lshl_add_u32 v170, v15, 3, v170
    s_lshl_b32 s78, s3, 9
    s_add_u32 s78, s78, {LWO}
    v_add_u32 v170, s78, v170
    v_lshlrev_b32 v172, 6, v9
    v_lshl_add_u32 v172, v8, 4, v172
    v_lshlrev_b32 v171, 4, v8
    v_add_u32 v171, {LOT}, v171
    v_lshrrev_b32 v173, 3, v0
    v_lshlrev_b32 v173, 12, v173
    v_and_b32 v15, 7, v0
    v_lshl_add_u32 v173, v15, 4, v173
    v_lshlrev_b32 v174, 11, v0
    s_lshl_b32 s78, s3, 7
    s_add_u32 s78, s78, {LF}
    v_add_u32 v175, s78, v2
    v_mov_b32 v14, {LCN}''')
    def kl(lbase, loff, srdn, soff, n16):
        L = []
        for t in range(n16):
            so = soff if t == 0 else 's70'
            for jj in range(4):
                pre = ''
                if jj == 0:
                    pre = f's_add_u32 m0, {lbase}, {loff + t * 4096}\n'
                    if t == 1: pre += f's_add_u32 s70, {soff}, 4096\n'
                L.append((pre, f'buffer_load_dwordx4 v{160+jj}, {srdn}, {so} offen offset:{jj*1024} {pol} lds'))
        return L
    def vl(dst, srdn, soff, n):
        L = []
        for j in range(n):
            so = soff if j < 4 else 's70'
            r = dst + j * 4
            pre = f's_add_u32 s70, {soff}, 4096\n' if j == 4 else ''
            L.append((pre, f'buffer_load_dwordx4 v[{r}:{r+3}], v2, {srdn}, {so} offen offset:{(j%4)*1024} {pol}'))
        return L
    WL = []
    for e in range(8):
        for hf in range(2):
            pre = f's_add_u32 m0, s63, {(e >> 1) * 16768 + (e & 1) * 8448}\ns_movk_i32 s70, {e * 2048}\n' if hf == 0 else ''
            WL.append((pre, f'buffer_load_dwordx4 v2, s[56:59], s70 offen offset:{hf * 1024} {pol} lds'))
    assert W1 % 2 == 0
    def qset(st):
        T = 48
        src = WQ + st * 32
        xr = 64 + st * 4
        for e in range(9):
            if e < 8: perm(T + (e % 4) * 4, src, e, 4)
            if e >= 1:
                if e == 8: A('s_nop 1')
                t = T + ((e - 1) % 4) * 4
                d = (e - 1) * 4
                c = '0' if st == 0 else f'a[{d}:{d+3}]'
                A(f'v_mfma_f32_16x16x32_bf16 a[{d}:{d+3}], v[{t}:{t+3}], v[{xr}:{xr+3}], {c}')
    A('s_waitcnt vmcnt(8)')
    qset(0)
    LA = kl('s69', 0, 's[44:47]', '0', 1) + vl(144, 's[48:51]', '0', 4)
    DA = min(D, 8)
    steps(LA[:DA], D)
    A(f's_waitcnt vmcnt({DA})')
    qset(1)
    A(f'''
    v_lshlrev_b32 v15, 7, v8
    s_lshl_b32 s78, s3, 9
    s_add_u32 s78, s78, {LQP}
    v_add_u32 v15, s78, v15
    s_mov_b32 exec_lo, 0x00010001
    s_mov_b32 exec_hi, 0x00020002
    s_nop 3''')
    for e in range(8):
        A(f'ds_write_b128 v15, a[{e*4}:{3+e*4}] offset:{e*16}')
    A('''s_mov_b64 exec, -1
    s_waitcnt lgkmcnt(0)
    s_barrier        ; B1
    s_add_u32 s72, s72, 1
    s_and_b32 s83, s72, 0xff
    s_mul_i32 s22, s83, 0x01010101
    s_mov_b32 s23, s22
    v_mov_b32 v1, s83''')
    stamp('b1')
    L1 = kl('s62', 8192, 's[36:39]', 's82', 2)
    L1[0] = ('s_add_u32 s82, s82, 0x200000\ns_and_b32 s82, s82, 0xffffff\n' + L1[0][0], L1[0][1])
    LRA = LA[DA:] + kl('s62', 0, 's[36:39]', 's82', 2) + vl(16, 's[40:43]', 's82', 8) + L1 + vl(48, 's[40:43]', 's82', 8)
    steps(LRA[:QC], D)
    A('s_barrier        ; B1b')
    steps(LRA[QC:], D)
    stamp('preb2')
    A('s_barrier        ; B2')
    stamp('b2')
    ACC, TT, S, U, P = 80, 112, 128, 136, 140
    Q = 64
    def qfrag(br):
        for m in range(4):
            A(f'ds_read_b128 a[{Q+m*4}:{Q+m*4+3}], v10 offset:{br*LQB + m*64}')
    def kread(addr, loff, nt):
        for m in range(4):
            for t in range(nt):
                r = t * 16 + m * 4
                A(f'ds_read_b128 a[{r}:{r+3}], v{addr+m} offset:{loff + t * 4096}')
    def qk(nt):
        k = 4 * nt
        for m in range(4):
            for t in range(nt):
                k -= 1
                A(f's_waitcnt lgkmcnt({k})')
                c = '0' if m == 0 else f'v[{S+t*4}:{S+t*4+3}]'
                A(f'v_mfma_f32_16x16x32_bf16 v[{S+t*4}:{S+t*4+3}], a[{t*16+m*4}:{t*16+m*4+3}], a[{Q+m*4}:{Q+m*4+3}], {c}')
    def roundscale(nv):
        for k in range(nv // 2): A(f'v_cvt_pk_bf16_f32 v{U+k}, v{S+2*k}, v{S+2*k+1}')
        for k in range(nv // 2):
            A(f'v_lshlrev_b32 v{S+2*k}, 16, v{U+k}\nv_and_b32 v{S+2*k+1}, s77, v{U+k}')
        for k in range(nv): A(f'v_mul_f32 v{S+k}, s75, v{S+k}')
        for k in range(nv // 2): A(f'v_cvt_pk_bf16_f32 v{U+k}, v{S+2*k}, v{S+2*k+1}')
        for k in range(nv // 2):
            A(f'v_lshlrev_b32 v{S+2*k}, 16, v{U+k}\nv_and_b32 v{S+2*k+1}, s77, v{U+k}')
    def exps(nv, first):
        A('v_mul_f32 v7, s76, v5')
        for k in range(nv): A(f'v_fma_f32 v{S+k}, v{S+k}, s76, -v7')
        for k in range(nv): A(f'v_exp_f32 v{S+k}, v{S+k}')
        A('s_nop 0')
        for k in range(nv // 2): A(f'v_cvt_pk_bf16_f32 v{P+k}, v{S+2*k}, v{S+2*k+1}')
        if first:
            A(f'v_add_f32 v6, v{S}, v{S+1}')
            for k in range(2, nv): A(f'v_add_f32 v6, v6, v{S+k}')
        else:
            for k in range(0, nv, 2): A(f'v_add_f32 v{S+k}, v{S+k}, v{S+k+1}')
            for k in range(0, nv, 4): A(f'v_add_f32 v{S+k}, v{S+k}, v{S+k+2}')
            A(f'v_add_f32 v{S}, v{S}, v{S+4}\nv_add_f32 v6, v6, v{S}')
    def pv(vb, half):
        njj = 2 if half else 4
        for e in range(9):
            if e < 8: perm(TT + (e % 4) * 4, vb, e, njj)
            if e >= 1:
                if e == 8: A('s_nop 1')
                elif half: A('s_nop 0')
                t = TT + ((e - 1) % 4) * 4
                d = ACC + (e - 1) * 4
                if half:
                    A(f'v_mfma_f32_16x16x16_bf16 v[{d}:{d+3}], v[{t}:{t+1}], v[{P}:{P+1}], 0')
                else:
                    A(f'v_mfma_f32_16x16x32_bf16 v[{d}:{d+3}], v[{t}:{t+3}], v[{P}:{P+3}], v[{d}:{d+3}]')
    def pub_ml(br):
        xg(6, 15, 'v_add_f32')
        A(f's_mov_b64 exec, 0xff\nds_write2_b32 v4, v5, v6 offset0:{br * 64} offset1:{br * 64 + 1}\ns_mov_b64 exec, -1')
    def publish(br, bar):
        A('s_mov_b32 exec_lo, 0x00ff00ff\ns_mov_b32 exec_hi, 0x00ff00ff')
        for e in range(8):
            A(f'ds_write_b128 v{168 if br else 11}, v[{ACC+e*4}:{ACC+e*4+3}] offset:{e*16}')
        A(f's_mov_b64 exec, -1')
        if br == 0: A(f'v_add_u32 v9, {LOA}, v12')
        A(f's_waitcnt lgkmcnt(0)\ns_barrier        ; {bar}')
        stamp('bar' + str(br))
        A(f'ds_read_b128 v[{TT}:{TT+3}], v3 offset:{br*256}\nds_read_b128 v[{TT+4}:{TT+7}], v3 offset:{br*256+16}')
        for w in range(4):
            A(f'ds_read_b128 v[{ACC+w*4}:{ACC+w*4+3}], v{12 if br else 9} offset:{w * (16384 if br else 4352)}')
        m = [TT, TT + 2, TT + 4, TT + 6]; l = [TT + 1, TT + 3, TT + 5, TT + 7]
        R = S
        if br: A('s_add_u32 s12, s12, 0x100000\ns_add_u32 s13, s13, 0x8000')
        A(f'''
    s_waitcnt lgkmcnt(4)
    v_max3_f32 v{U}, v{m[0]}, v{m[1]}, v{m[2]}
    v_max_f32 v{U}, v{U}, v{m[3]}
    v_mul_f32 v7, s76, v{U}''')
        for w in range(4): A(f'v_fma_f32 v{m[w]}, v{m[w]}, s76, -v7')
        for w in range(4): A(f'v_exp_f32 v{m[w]}, v{m[w]}')
        A(f'v_mul_f32 v{U+1}, v{m[0]}, v{l[0]}')
        for w in range(1, 4): A(f'v_fmac_f32 v{U+1}, v{m[w]}, v{l[w]}')
        A(f'v_rcp_f32 v{U+2}, v{U+1}\nv_log_f32 v{U+3}, v{U+1}')
        A('s_waitcnt lgkmcnt(0)')
        for k in (0, 2): A(f'v_pk_mul_f32 v[{R+k}:{R+k+1}], v[{ACC+k}:{ACC+k+1}], v[{m[0]}:{m[0]+1}] op_sel_hi:[1,0]')
        for w in range(1, 4):
            for k in (0, 2): A(f'v_pk_fma_f32 v[{R+k}:{R+k+1}], v[{ACC+w*4+k}:{ACC+w*4+k+1}], v[{m[w]}:{m[w]+1}], v[{R+k}:{R+k+1}] op_sel_hi:[1,0,1]')
        A(f'v_add_f32 v{U+3}, v{U+3}, v7')
        for k in (0, 2): A(f'v_pk_mul_f32 v[{R+k}:{R+k+1}], v[{R+k}:{R+k+1}], v[{U+2}:{U+3}] op_sel_hi:[1,0]')
        A(f'v_add_u32 v{U+3}, 0x80, v{U+3}')
        for r in (R, R + 1, R + 2, R + 3, U + 3): A(f'v_bfi_b32 v{r}, s19, v1, v{r}')
        A(f'''
    buffer_store_dwordx4 v[{R}:{R+3}], v13, s[64:67], s12 offen sc1
    s_mov_b32 exec_lo, 1
    s_mov_b32 exec_hi, 1
    buffer_store_dword v{U+3}, v169, s[64:67], s13 offen sc1''')
        if br == 1: A('s_mov_b32 exec_hi, 0\nbuffer_store_byte v1, off, s[64:67], s14 sc1')
        A('s_mov_b64 exec, -1')
    qfrag(0)
    A('s_sub_u32 s78, s69, s62')
    for m in range(4): A(f'v_add_u32 v{TT+m}, s78, v{164+m}')
    A('s_waitcnt vmcnt(32)')
    kread(TT, 0, 1)
    qk(1)
    qfrag(1)
    A('s_nop 4')
    roundscale(4)
    A(f'v_max3_f32 v5, v{S}, v{S+1}, v{S+2}\nv_max_f32 v5, v5, v{S+3}')
    xg(5, 15, 'v_max_f32')
    exps(4, True)
    pv(144, True)
    pub_ml(0)
    publish(0, 'B3a')
    for k in range(0, 32, 2): A(f'v_mov_b64 v[{ACC+k}:{ACC+k+1}], 0')
    A('v_mov_b32 v5, 0xff7fffff\nv_mov_b32 v6, 0\ns_mov_b32 s81, 0\ns_mov_b32 s68, 0')
    A('s_cmp_ge_u32 s33, 32\ns_cbranch_scc1 L_nowarm')
    for k in range(4): A(f's_load_dword s{6+k}, s[4:5], {128*k} glc')
    A('L_nowarm:')
    stamp('loop')
    if stamps or AGM: A('s_mov_b32 s80, 0')
    A('L_loop:')
    if AGM: A(f's_cmp_eq_u32 s80, {AGM}\ns_cbranch_scc0 L_noclk\ns_barrier        ; B3c\nL_noclk:')
    for b in range(2):
        vb = 16 + b * 32
        if stamps or AGM: A('s_add_u32 s80, s80, 1')
        A(f's_cmp_eq_u32 s68, 0\ns_waitcnt vmcnt(24)\ns_cbranch_scc1 L_w1{b}\ns_waitcnt vmcnt(12)\nL_w1{b}:')
        kread(164, b * 8192, 2)
        qk(2)
        A('s_nop 7')
        roundscale(8)
        A(f's_bitcmp0_b32 s68, {b}\ns_cbranch_scc1 L_full{b}')
        for k in range(4, 8): A(f'v_mov_b32 v{S+k}, 0xff800000')
        A(f'L_full{b}:')
        A(f'v_max3_f32 v8, v{S}, v{S+1}, v5\nv_max3_f32 v9, v{S+2}, v{S+3}, v{S+4}\nv_max3_f32 v8, v8, v{S+5}, v{S+6}\nv_max3_f32 v8, v8, v9, v{S+7}')
        xg(8, 15, 'v_max_f32')
        A(f'''
    v_cmp_gt_f32 vcc, v8, v5
    s_cbranch_vccz L_nors{b}
    v_sub_f32 v9, v5, v8
    v_mul_f32 v9, s76, v9
    v_exp_f32 v9, v9
    v_mov_b32 v5, v8
    v_mul_f32 v6, v6, v9''')
        for k in range(32): A(f'v_mul_f32 v{ACC+k}, v{ACC+k}, v9')
        A(f'L_nors{b}:')
        exps(8, False)
        A(f'''
    s_cmp_lg_u32 s81, 0
    s_cbranch_scc1 L_s1alt{b}
    s_waitcnt lgkmcnt(0)
    s_add_u32 s82, s60, {64 * NS}
    s_lshl_b32 s82, s82, 1
    s_cmp_lt_i32 s60, {NF}
    s_cbranch_scc1 L_fullc{b}
    s_add_u32 s82, s60, {128 * NS + NF}
    s_cmp_ge_u32 s82, 1024
    s_cbranch_scc1 L_s1none{b}
    s_or_b32 s68, s68, {4 | (1 << b)}
L_fullc{b}:
    s_and_b32 s78, s82, 1
    s_lshr_b32 s82, s82, 1
    s_lshl_b32 s82, s82, 3
    s_add_u32 s82, s82, s78
    s_lshl_b32 s82, s82, 12
    s_add_u32 s82, s82, s71
    s_and_b32 s82, s82, 0xffffff''')
        KL = kl('s62', b * 8192, 's[36:39]', 's82', 2)
        steps(KL[:4], DL)
        A(f's_bitcmp1_b32 s68, {b}\ns_cbranch_scc1 L_s1ret{b}')
        steps(KL[4:], DL)
        A(f'L_s1ret{b}:')
        A(f's_cmp_eq_u32 s68, 0\ns_waitcnt vmcnt(16)\ns_cbranch_scc1 L_w2{b}\ns_waitcnt vmcnt(8)\nL_w2{b}:')
        pv(vb, False)
        A(f'''
    s_cmp_lg_u32 s81, 0
    s_cbranch_scc1 L_s2alt{b}
    s_add_u32 s60, s60, 64
    s_sub_u32 s61, s61, 1
    s_cbranch_scc0 L_stat{b}
    s_mov_b32 s61, 0
    s_mov_b32 s60, 1
    s_atomic_add s60, s[34:35], 0 glc
L_stat{b}:''')
        VL = vl(vb, 's[40:43]', 's82', 8)
        steps(VL[:4], DL)
        A(f's_bitcmp1_b32 s68, {b}\ns_cbranch_scc1 L_s2ret{b}')
        steps(VL[4:], DL)
        if b == 0: A('L_s2ret0:')
        else: A('s_branch L_loop')
    A('.set L_s2ret1, L_loop')
    for b in range(2):
        A(f'L_s1none{b}:')
        stamp('none')
        A(f's_mov_b32 s81, 1\ns_branch L_s1ret{b}')
        A(f'L_s1alt{b}:\ns_mov_b32 s81, 2')
        pub_ml(1)
        steps(WL[:W1], DW); A(f's_waitcnt vmcnt({W1})\ns_branch L_w2{b}')
        A(f'L_s2alt{b}:\ns_cmp_lg_u32 s81, 1\ns_cbranch_scc1 L_exit')
        A(f's_waitcnt vmcnt(4)\ns_branch L_s2ret{b}')
    A('L_exit:')
    stamp('vlast'); cstamp('ctiles', 's80')
    publish(1, 'B3')
    stamp('pub')
    steps(WL[W1:], DW2 + 3)
    for k in range(64): A(f'v_accvgpr_write_b32 a{k}, 0')
    A('''v_mov_b32 v15, 1
    s_waitcnt vmcnt(0)
    s_mov_b64 exec, 1
    ds_add_u32 v14, v15
    s_mov_b64 exec, -1
L_wosp:
    ds_read_b32 v15, v14
    s_waitcnt lgkmcnt(0)
    v_cmp_gt_u32 vcc, 4, v15
    s_cbranch_vccnz L_wosp''')
    stamp('wo')
    for x in range(16):
        for h in range(2):
            r = 16 + x * 4 + h * 2
            A(f'ds_read_b64_tr_b16 v[{r}:{r+1}], v170 offset:{x * 32 + h * 8448}')
    A('s_mov_b32 s52, s24\ns_mov_b32 s53, s25\ns_movk_i32 s54, 0x1000\ns_mov_b32 s55, 0x20000\ns_mov_b32 s81, 0')
    A('s_mov_b32 exec_lo, 0x00010001\ns_mov_b32 exec_hi, 0x00010001\ns_waitcnt lgkmcnt(0)\ns_barrier        ; B4')
    LAG = 4
    def gm(y):
        c = '0' if y < 2 else f'v[{80 + (y & 1) * 4}:{83 + (y & 1) * 4}]'
        A(f'v_mfma_f32_16x16x32_bf16 v[{80 + (y & 1) * 4}:{83 + (y & 1) * 4}], v[{16+y*4}:{19+y*4}], a[{y*4}:{y*4+3}], {c}')
    for x in range(16):
        A(f'ds_read_b128 a[{x*4}:{x*4+3}], v171')
        A('s_lshl_b64 exec, exec, 1' if x < 15 else 's_mov_b64 exec, -1')
        if x >= LAG:
            A(f's_waitcnt lgkmcnt({LAG})')
            if x == LAG: stamp('b4')
            gm(x - LAG)
    for y in range(16 - LAG, 16):
        A(f's_waitcnt lgkmcnt({15 - y})'); gm(y)
    A('s_nop 7\nv_pk_add_f32 v[80:81], v[80:81], v[84:85]\nv_pk_add_f32 v[82:83], v[82:83], v[86:87]')
    for k in range(4): A(f'v_bfi_b32 v{80+k}, s19, v1, v{80+k}')
    A(f'''buffer_store_dwordx4 v[80:83], v172, s[64:67], s15 offen sc1
    s_mov_b64 exec, {'0xff' if H2 == 'i' else '1'}
    buffer_store_byte v1, v174, s[64:67], s16 offen sc1
    s_mov_b64 exec, -1''')
    stamp('end')
    if opt.get('nosync'): A('s_branch L_fin')
    A(f'''s_cmp_ge_u32 s33, 32
    s_cbranch_scc1 L_fin
L_ofpoll:
    s_load_dwordx2 s[40:41], s[4:5], 0 glc
    s_load_dwordx2 s[42:43], s[4:5], 128 glc
    s_load_dwordx2 s[44:45], s[4:5], 256 glc
    s_load_dwordx2 s[46:47], s[4:5], 384 glc
    s_add_u32 s81, s81, 1
    s_cmp_gt_u32 s81, {SPIN}
    s_cbranch_scc1 L_fgather
    s_waitcnt lgkmcnt(0)
    s_xor_b64 s[40:41], s[40:41], s[22:23]
    s_xor_b64 s[42:43], s[42:43], s[22:23]
    s_xor_b64 s[44:45], s[44:45], s[22:23]
    s_xor_b64 s[46:47], s[46:47], s[22:23]
    s_or_b64 s[40:41], s[40:41], s[42:43]
    s_or_b64 s[44:45], s[44:45], s[46:47]
    s_or_b64 s[40:41], s[40:41], s[44:45]
    s_cbranch_scc1 L_ofpoll''')
    stamp('fpre')
    A('L_fgather:')
    for i in range(4):
        r = 16 + i * 4
        if i == 0: A(f'buffer_load_dwordx4 v[{r}:{r+3}], v173, s[64:67], s17 offen sc1')
        else: A(f's_add_u32 s79, s17, {i * 8 * 4096}\nbuffer_load_dwordx4 v[{r}:{r+3}], v173, s[64:67], s79 offen sc1')
    A(f's_add_u32 s81, s81, 1\nv_lshlrev_b32 v10, 3, v0\nv_add_u32 v10, {LF}, v10\nv_lshlrev_b32 v11, 2, v0\nv_mov_b32 v40, s72')
    for i in range(4):
        r = 16 + i * 4
        A(f's_waitcnt vmcnt({3 - i})')
        for k in range(4):
            if i == 0 and k < 2: A(f'v_xor_b32 v{8+k}, s83, v{r+k}')
            else: A(f'v_bitop3_b32 v{8 + (k & 1)}, v{8 + (k & 1)}, v{r+k}, s83 bitop3:0xf6')
        for k in range(4): A(f'v_and_b32 v{r+k}, s20, v{r+k}')
        if i: A(f'v_pk_add_f32 v[16:17], v[16:17], v[{r}:{r+1}]\nv_pk_add_f32 v[18:19], v[18:19], v[{r+2}:{r+3}]')
    A(f'''v_or_b32 v8, v8, v9
    v_and_b32 v8, s19, v8
    v_cmp_ne_u32 vcc, 0, v8
    s_cbranch_vccz L_fok
    s_cmp_gt_u32 s81, {SPIN}
    s_cbranch_scc0 L_fgather
L_fok:''')
    stamp('fok')
    for k in range(4): A(f'v_add_f32_dpp v{16+k}, v{16+k}, v{16+k} row_ror:8 row_mask:0xf bank_mask:0xf')
    xg4([16, 17, 18, 19], [20, 21, 22, 23], 'v_add_f32')
    A(f'''s_mov_b64 exec, 0xff
    ds_write_b128 v175, v[16:19]
    s_mov_b64 exec, 0xffff
    s_cmp_eq_u32 s3, 0
    s_waitcnt lgkmcnt(0)
    s_barrier        ; B5
    s_cbranch_scc0 L_fin
    ds_read_b64 v[16:17], v10
    ds_read_b64 v[18:19], v10 offset:128
    ds_read_b64 v[20:21], v10 offset:256
    ds_read_b64 v[22:23], v10 offset:384
    s_cmp_eq_u32 s2, 0
    s_waitcnt lgkmcnt(2)
    v_pk_add_f32 v[16:17], v[16:17], v[18:19]
    s_waitcnt lgkmcnt(0)
    v_pk_add_f32 v[20:21], v[20:21], v[22:23]
    v_pk_add_f32 v[16:17], v[16:17], v[20:21]
    v_cvt_pk_bf16_f32 v16, v16, v17
    buffer_store_dword v16, v11, s[52:55], s18 offen
    s_cbranch_scc0 L_noep
    s_mov_b64 exec, 1
    buffer_store_dword v40, off, s[64:67], 0 sc1
L_noep:''')
    stamp('fin')
    A('s_branch L_fin')
    A('L_sync:')
    insync[0] = 1
    A(f"s_setprio {opt.get('prio', 3)}")
    A(f'''v_mov_b32 v16, 0
    v_mov_b32 v20, {LCN}
    ds_write_b32 v20, v16''')
    if opt.get('nosync'):
        A('s_waitcnt lgkmcnt(0)\n' + 's_barrier\n' * (7 if AGM else 6) + 's_branch L_fin')
    A('s_waitcnt lgkmcnt(0)\ns_load_dword s72, s[28:29], 0')

    if opt.get('tlb'):
        A('s_lshl_b32 s78, s30, 24')
        srd(36, 16, 17, 's78', 0x1000000); srd(40, 18, 19, 's78', 0x1000000)
        A('''s_cmp_eq_u32 s32, 0
    s_cselect_b32 s56, s12, s22
    s_cselect_b32 s57, s13, s23
    s_mov_b32 s58, 0x800000
    s_mov_b32 s59, 0x20000
    s_lshl_b32 s78, s31, 15
    s_lshl_b32 s79, s33, 16
    v_lshlrev_b32 v21, 21, v0
    s_mov_b64 exec, 0xff
    buffer_load_dword v22, v21, s[36:39], s78 offen nt
    buffer_load_dword v23, v21, s[40:43], s78 offen nt
    s_mov_b64 exec, 1
    buffer_load_dword v24, v21, s[56:59], s79 offen nt
    s_mov_b64 exec, -1''')
    srd(64, 28, 29, None, WSSZ)
    A(f'''
    s_movk_i32 s77, 0xff00                  ; 0xffffff00
    s_movk_i32 s75, 0xff
    s_and_b32 s36, s33, 0x4f
    s_xor_b32 s37, s32, 1
    s_or_b32 s36, s36, s37
    s_cbranch_scc1 L_nopool
    s_bfe_u32 s36, s33, 0x20004
    s_lshl_b32 s36, s36, 10
    s_add_u32 s36, s36, {POOL}
    v_lshlrev_b32 v3, 8, v0
    s_mov_b64 exec, 0xf
    buffer_store_dword v16, v3, s[64:67], s36 offen sc1
    s_mov_b64 exec, -1
    s_waitcnt vmcnt(0)
L_nopool:
    v_lshrrev_b32 v3, 5, v0
    v_lshlrev_b32 v3, 5, v3
    v_and_b32 v15, 3, v0
    v_lshl_add_u32 v3, v15, 3, v3
    v_bfe_u32 v15, v0, 2, 3
    v_add_u32 v3, v3, v15
    v_lshlrev_b32 v3, 2, v3
    v_lshlrev_b32 v4, 2, v0
    v_add_u32 v4, {LQP}, v4
    v_lshrrev_b32 v5, 5, v0
    v_mul_u32_u24 v5, 272, v5
    v_and_b32 v15, 31, v0
    v_lshl_add_u32 v5, v15, 3, v5
    v_add_u32 v5, {LQ}, v5''')
    lin('s78', QP, [('s32', 0, None, 15), ('s33', 6, None, 14), ('s33', 0, 63, 8)])
    lin('s80', QP, [('s30', 0, None, 12)])
    A(f'''
    s_waitcnt lgkmcnt(0)
    s_add_u32 s72, s72, 1
    s_and_b32 s74, s72, 0xff
    s_mul_i32 s82, s74, 0x01010101
    s_mov_b32 s83, s82
    v_mov_b32 v1, s74
    s_barrier        ; B1''')
    stamp('b1')
    for k in range(8): A(f'ds_read_b32 v{16+k}, v4 offset:{k*256}')
    A(f'''
    s_waitcnt lgkmcnt(0)
    v_add_f32 v16, v16, v17
    v_add_f32 v18, v18, v19
    v_add_f32 v20, v20, v21
    v_add_f32 v22, v22, v23
    v_add_f32 v16, v16, v18
    v_add_f32 v20, v20, v22
    v_add_f32 v24, v16, v20
    v_add_u32 v24, 0x80, v24
    v_bfi_b32 v24, s75, v1, v24
    buffer_store_dword v24, v3, s[64:67], s78 offen sc1
    s_mov_b32 s81, 0
    s_barrier        ; B1b''')
    stamp('qpre')
    def verdict(ok, retry):
        A(f'''v_or_b32 v10, v10, v11
    v_and_b32 v10, s75, v10
    v_cmp_ne_u32 vcc, 0, v10
    s_cbranch_vccz {ok}
    s_cmp_gt_u32 s81, {SPIN}
    s_cbranch_scc0 {retry}
{ok}:''')
    A('L_qgather:')
    for br in range(2):
        for half in range(2):
            A(f's_add_u32 s70, s80, {br * 0x8000 + half * 0x4000}')
            for i in range(4):
                r = 16 + (br * 8 + half * 4 + i) * 4
                A(f'buffer_load_dwordx4 v[{r}:{r+3}], v2, s[64:67], s70 offen offset:{i*1024} sc1')
    A(f's_add_u32 s81, s81, 1\ns_waitcnt vmcnt(0)\nv_xor_b32 v10, s74, v16\nv_xor_b32 v11, s74, v17')
    for k, r in enumerate(range(18, 80)): A(f'v_bitop3_b32 v{10 + (k & 1)}, v{10 + (k & 1)}, v{r}, s74 bitop3:0xf6')
    verdict('L_qok', 'L_qgather')
    stamp('qgat'); cstamp('cqgat', 's81')
    for br in range(2):
        for i in range(4):
            r = 16 + (br * 8 + i) * 4
            for k in range(4): A(f'v_and_b32 v{r+k}, s77, v{r+k}\nv_and_b32 v{r+16+k}, s77, v{r+16+k}\nv_add_f32 v{r+k}, v{r+k}, v{r+16+k}')
            A(f'v_cvt_pk_bf16_f32 v{r}, v{r}, v{r+1}\nv_cvt_pk_bf16_f32 v{r+1}, v{r+2}, v{r+3}')
            A(f'ds_write_b64 v5, v[{r}:{r+1}] offset:{br*LQB + i*2*272}')
    A('s_waitcnt lgkmcnt(0)\ns_barrier        ; B2')
    lin('s78', PART, [('s32', 0, None, 20), ('s33', 5, None, 18), ('s33', 0, 31, 7)])
    lin('s79', IN1, [('s32', 0, None, 15), ('s33', 2, None, 10)])
    lin('s80', IN3, [('s33', 3, None, 11)])
    A(f'''
    s_add_u32 s38, s28, s80
    s_addc_u32 s39, s29, 0
    s_add_u32 s36, s28, s79
    s_addc_u32 s37, s29, 0
    v_lshrrev_b32 v15, 3, v0
    v_lshlrev_b32 v5, 12, v15
    v_and_b32 v13, 7, v0
    v_lshl_add_u32 v5, v13, 4, v5           ; (l>>3)*4096 + (l&7)*16
    v_lshlrev_b32 v14, 7, v15
    v_lshl_add_u32 v14, v13, 2, v14         ; (l>>3)*128 + (l&7)*4
    v_lshlrev_b32 v3, 3, v0
    v_add_u32 v3, {LOT}, v3
    v_lshlrev_b32 v6, 5, v13
    v_lshl_add_u32 v6, v15, 2, v6
    v_add_u32 v6, {LW}, v6
    v_lshlrev_b32 v7, 5, v15
    v_add_u32 v7, {LW}, v7
    s_mov_b32 s81, 0
    s_cmp_eq_u32 s32, 0
    s_cbranch_scc1 L_nowarm1''')
    for k in range(4): A(f's_load_dword s{40+k}, s[38:39], {128*k} glc')
    for k in range(8): A(f's_load_dword s{48+k}, s[36:37], {128*k} glc')
    A('L_nowarm1:\ns_barrier        ; B3a\ns_waitcnt lgkmcnt(0)')
    if AGM: A('s_barrier        ; B3c\ns_cmp_eq_u32 s32, 0\ns_cbranch_scc1 L_pgather\ns_barrier        ; B3')
    else: A('s_barrier        ; B3')
    stamp('pgs')
    A('s_cmp_eq_u32 s32, 0\ns_cbranch_scc1 L_pgather\nL_sppoll:')
    for k in range(4): A(f's_load_dwordx4 s[{40+4*k}:{43+4*k}], s[38:39], {128*k} glc')
    A(f's_add_u32 s81, s81, 1\ns_cmp_gt_u32 s81, {SPIN}\ns_cbranch_scc1 L_pgather\ns_waitcnt lgkmcnt(0)')
    regs = list(range(40, 56, 2))
    for r in regs: A(f's_xor_b64 s[{r}:{r+1}], s[{r}:{r+1}], s[82:83]')
    while len(regs) > 1:
        nr = []
        for a, b in zip(regs[0::2], regs[1::2]):
            A(f's_or_b64 s[{a}:{a+1}], s[{a}:{a+1}], s[{b}:{b+1}]'); nr.append(a)
        regs = nr
    A('s_cbranch_scc1 L_sppoll')
    stamp('ppre')
    A('L_pgather:')
    A('buffer_load_dword v12, v14, s[64:67], s79 offen sc1')
    for i in range(8):
        r = 16 + i * 4
        if i == 0: A(f'buffer_load_dwordx4 v[{r}:{r+3}], v5, s[64:67], s78 offen sc1')
        else: A(f's_add_u32 s70, s78, {i * 8 * 4096}\nbuffer_load_dwordx4 v[{r}:{r+3}], v5, s[64:67], s70 offen sc1')
    def allred(reg, tmp, op):
        for n in (1, 2, 4, 8):
            A(f's_nop 1\n{op}_dpp v{reg}, v{reg}, v{reg} row_ror:{n} row_mask:0xf bank_mask:0xf')
        xg(reg, tmp, op)
    A('s_add_u32 s81, s81, 1\ns_waitcnt vmcnt(8)\nv_and_b32 v48, s77, v12\nv_xor_b32 v10, s74, v12\nv_mov_b32 v50, v48\nv_mov_b32 v11, 0')
    allred(50, 51, 'v_max_f32')
    A(f'''
    v_sub_f32 v48, v48, v50
    v_exp_f32 v49, v48
    s_nop 0
    ds_write_b32 v6, v49
    s_waitcnt lgkmcnt(0)
    ds_read_b128 v[52:55], v7
    ds_read_b128 v[56:59], v7 offset:16''')
    allred(49, 51, 'v_add_f32')
    A('v_rcp_f32 v68, v49\ns_waitcnt lgkmcnt(0)')
    for i in range(8):
        r = 16 + 4 * i
        A(f's_waitcnt vmcnt({7 - i})')
        for k in range(4): A(f'v_bitop3_b32 v{10 + (k & 1)}, v{10 + (k & 1)}, v{r+k}, s74 bitop3:0xf6')
        for k in range(4): A(f'v_and_b32 v{r+k}, s77, v{r+k}')
        wp = 52 + (i & ~1); sel = i & 1
        for k in (0, 2):
            if i == 0: A(f'v_pk_mul_f32 v[{60+k}:{61+k}], v[{r+k}:{r+k+1}], v[{wp}:{wp+1}] op_sel_hi:[1,0]')
            else: A(f'v_pk_fma_f32 v[{60+k}:{61+k}], v[{r+k}:{r+k+1}], v[{wp}:{wp+1}], v[{60+k}:{61+k}] op_sel:[0,{sel},0] op_sel_hi:[1,{sel},1]')
    verdict('L_pok', 'L_pgather')
    stamp('pgok'); cstamp('cpg', 's81')
    for k in range(4): A(f'v_add_f32_dpp v{60+k}, v{60+k}, v{60+k} row_ror:8 row_mask:0xf bank_mask:0xf')
    xg4([60, 61, 62, 63], [64, 65, 66, 67], 'v_add_f32')
    A(f'''v_pk_mul_f32 v[60:61], v[60:61], v[68:69] op_sel_hi:[1,0]
    v_pk_mul_f32 v[62:63], v[62:63], v[68:69] op_sel_hi:[1,0]
    s_mov_b64 exec, 0xff
    v_cvt_pk_bf16_f32 v60, v60, v61
    v_cvt_pk_bf16_f32 v61, v62, v63
    ds_write_b64 v3, v[60:61]''')
    if AGM: A('s_cmp_eq_u32 s32, 0\ns_cbranch_scc0 L_nob3\ns_barrier        ; B3 (A role)\nL_nob3:')
    A('s_waitcnt lgkmcnt(0)\ns_barrier        ; B4')
    stamp('b4')
    A('L_fin:')
    if opt.get('holdat'):
        A('''s_cmp_eq_u32 s99, 0
    s_cbranch_scc1 L_nohold
L_hold2:
    s_memrealtime s[86:87]
    s_waitcnt lgkmcnt(0)
    s_sub_u32 s86, s86, s84
    s_cmp_lt_u32 s86, 3000
    s_cbranch_scc1 L_hold2
L_nohold:''')
    if stamps:
        A('s_waitcnt vmcnt(0) lgkmcnt(0)\ns_mov_b64 exec, 1')
        for k in range(16): A(f'v_mov_b32 v{16+k}, s{84+k}')
        A(f'''
    s_mul_i32 s78, s100, 5
    s_add_u32 s78, s78, s101
    s_lshl_b32 s78, s78, 6
    s_add_u32 s78, s78, {STAMP}
    v_mov_b32 v1, s78''')
        for k in range(4): A(f'global_store_dwordx4 v1, v[{16+4*k}:{19+4*k}], s[28:29] offset:{16*k}')
    A('''
L_end:
    s_endpgm
.section .rodata,"a"
.p2align 6
''')
    A(kdesc(name, 256, 102, 176).replace('.end_amdhsa', '  .amdhsa_float_denorm_mode_32 3\n.end_amdhsa'))
    t = A.text()
    if opt.get('nost'):
        t = '\n'.join(('s_nop 0' if 'buffer_store' in l else l) for l in t.split('\n'))
    open(fn, 'w').write(t)

if __name__ == '__main__':
    for spec in sys.argv[1:]:
        fn, _, o = spec.partition(':')
        opt = {}
        for kv in filter(None, o.split(',')):
            k, _, v = kv.partition('=')
            try: v = int(v, 0)
            except ValueError: v = v.replace('+', ' ')
            opt[k] = v
        gen(fn, opt)
```

```python
import sys
from asmlib import *

QP   = 0x1000
POOL = 0x14000
PART = 0x40000
OP   = 0x240000
IN3  = 0x350000
IN2  = 0x360000
IN1  = 0x380000
WSSZ = 0x3c0000
STAMP = 0x10000000
LK  = 0
LWO = 65536
LOA = LWO + 67072
LQP = LOA + 4 * 4352
LQ  = LQP + 2048
LQB = 8 * 272
LML = LQ + 2 * LQB
LW  = LML + 512
LF  = LW + 256
LOT = LF + 512
LCN = LOT + 64
LDSSZ = LCN + 16
SPIN = 400000

def gen(fn, opt=None):
    opt = opt or {}
    stamps = bool(opt.get('st'))
    pol = opt.get('pol', 'nt')
    NS = opt.get('NS', 6); NH = opt.get('NH', 0); NF = 512 - 64 * NS - NH
    D = opt.get('D', 8); DL = opt.get('DL', 16); DW = opt.get('DW', 4); DW2 = opt.get('DW2', 6)
    W1 = opt.get('W1', DW); QC = opt.get('QC', 18); RK = opt.get('rk', 0); ROT = opt.get('rot', 22); AGM = opt.get('agm', 0)
    LS = opt.get('ls', 0); QS = opt.get('qs', 1)
    H2 = opt.get('h2', 's'); EF1 = opt.get('ef1', 1); EF2 = opt.get('ef2', 1)
    A = Asm()
    name = KN + '_kernel'
    A(open('cdna_kernels/' + KN + '.s.ref').read().split('; Override launch')[0].rstrip('\n'))
    A(header([(None, 256, 320, LDSSZ)]))
    A(kstart(name))
    insync = [0]
    CS = opt.get('cs', 'start.loop.vlast.wo.end.fpre.fok.fin').split('.')
    SS = opt.get('ss', 'start.qpre.qgat.pgs.ppre.pgok.b4.cpg').split('.')
    def stamp(nm):
        L = SS if insync[0] else CS
        if opt.get('holdat') == ('s' if insync[0] else 'c') + nm:
            A('s_memrealtime s[84:85]\ns_mov_b32 s99, 1')
        if stamps and nm in L:
            k = L.index(nm)
            A(f's_memrealtime s[{84 + 2 * k}:{85 + 2 * k}]')
    def cstamp(nm, reg):
        L = SS if insync[0] else CS
        if stamps and nm in L:
            k = L.index(nm)
            A(f's_waitcnt lgkmcnt(0)\ns_mul_i32 s{84+2*k}, {reg}, 100\ns_add_u32 s{84+2*k}, s{84+2*k}, s84\ns_addc_u32 s{85+2*k}, s85, 0')
    def srd(d, lo, hi, off, size):
        if off is None:
            A(f's_mov_b32 s{d}, s{lo}\ns_mov_b32 s{d+1}, s{hi}')
        else:
            A(f's_add_u32 s{d}, s{lo}, {off}\ns_addc_u32 s{d+1}, s{hi}, 0')
        A(f's_mov_b32 s{d+2}, {size}\ns_mov_b32 s{d+3}, 0x20000')
    def lin(dst, const, terms, tmp='s70'):
        first = True
        for src, shr, mask, shl in terms:
            t = dst if first else tmp
            cur = src
            if shr: A(f's_lshr_b32 {t}, {cur}, {shr}'); cur = t
            if mask is not None: A(f's_and_b32 {t}, {cur}, {mask}'); cur = t
            if shl: A(f's_lshl_b32 {t}, {cur}, {shl}'); cur = t
            if first:
                if cur != dst: A(f's_mov_b32 {dst}, {cur}')
            else: A(f's_add_u32 {dst}, {dst}, {cur}')
            first = False
        if const: A(f's_add_u32 {dst}, {dst}, {const}')
    def steps(L, d):
        for pre, ld in L:
            if pre: A(pre.rstrip())
            A(f's_waitcnt vmcnt({d - 1})')
            A(ld)
    def xg(reg, tmp, op):
        A(f'v_mov_b32 v{tmp}, v{reg}\ns_nop 1\nv_permlane16_swap_b32 v{reg}, v{tmp}\ns_nop 1\n{op} v{reg}, v{reg}, v{tmp}')
        A(f'v_mov_b32 v{tmp}, v{reg}\ns_nop 1\nv_permlane32_swap_b32 v{reg}, v{tmp}\ns_nop 1\n{op} v{reg}, v{reg}, v{tmp}')
    def xg4(regs, tmps, op):
        for sw in ('v_permlane16_swap_b32', 'v_permlane32_swap_b32'):
            for r, t in zip(regs, tmps): A(f'v_mov_b32 v{t}, v{r}')
            for r, t in zip(regs, tmps): A(f'{sw} v{r}, v{t}')
            for r, t in zip(regs, tmps): A(f'{op} v{r}, v{r}, v{t}')
    def perm(dst, src, e, njj):
        dd, hi = e >> 1, e & 1
        for jj in range(njj):
            A(f'v_perm_b32 v{dst+jj}, v{src+(2*jj+1)*4+dd}, v{src+2*jj*4+dd}, s{74 if hi else 73}')
    A(f'''
    s_cmp_ge_u32 s2, 256
    s_cbranch_scc1 L_end
    s_load_dwordx16 s[4:19], s[0:1], 0
    s_load_dwordx8 s[20:27], s[0:1], 64
    s_load_dwordx2 s[28:29], s[0:1], 96     ; ws''')
    stamp('start')
    if opt.get('holdat') and opt['holdat'] != 'cstart': A('s_mov_b32 s99, 0')
    A(f'''
    v_lshrrev_b32 v1, 6, v0
    v_and_b32 v0, 63, v0
    v_readfirstlane_b32 s3, v1
    s_lshr_b32 s30, s2, 6
    s_and_b32 s31, s2, 63
    s_bfe_u32 s32, s2, 0x10003
    s_lshr_b32 s33, s2, 4
    s_lshl_b32 s33, s33, 3
    s_and_b32 s70, s2, 7
    s_add_u32 s33, s33, s70
    v_lshlrev_b32 v2, 4, v0                 ; lane*16
    v_lshrrev_b32 v8, 4, v0                 ; g
    v_and_b32 v9, 15, v0                    ; n''')
    if stamps: A('s_mov_b32 s100, s2\ns_mov_b32 s101, s3')
    A('s_cmp_eq_u32 s3, 4\ns_cbranch_scc1 L_sync')
    A(f'''
    v_lshrrev_b32 v72, 3, v0
    v_lshlrev_b32 v72, 16, v72
    v_and_b32 v15, 7, v0
    v_lshl_add_u32 v72, v15, 4, v72
    v_and_b32 v15, 1, v0
    v_lshl_add_u32 v4, v8, 1, v15
    v_lshlrev_b32 v4, 4, v4''')
    lin('s78', 0, [('s33', 0, 63, 7), ('s33', 6, None, 22), ('s3', 0, None, 20)])
    lin('s80', 0, [('s33', 6, None, 10), ('s3', 0, None, 8)])
    A(f'''
    s_sub_u32 s54, 0x800000, s78
    s_mov_b32 s55, 0x20000
    s_mov_b32 s62, 2048
    s_mov_b32 s63, 0x20000
    s_cmp_eq_u32 s32, 0
    s_waitcnt lgkmcnt(0)
    s_cselect_b32 s52, s10, s20
    s_cselect_b32 s53, s11, s21
    s_cselect_b32 s60, s4, s14
    s_cselect_b32 s61, s5, s15
    s_cselect_b32 s56, s12, s22
    s_cselect_b32 s57, s13, s23
    s_add_u32 s52, s52, s78
    s_addc_u32 s53, s53, 0''')
    stamp('karg')
    WQ = 80
    WQL = []
    for st in range(2):
        for j in range(8):
            off = (st * 64 + j) * 8192
            r = WQ + (st * 8 + j) * 4
            if off == 0:
                WQL.append(f'buffer_load_dwordx4 v[{r}:{r+3}], v72, s[52:55], 0 offen {pol}\nbuffer_load_dwordx4 v[64:67], v4, s[60:63], s80 offen\nbuffer_load_dwordx4 v[68:71], v4, s[60:63], s80 offen offset:128')
            else:
                WQL.append(f's_mov_b32 s70, {off}\nbuffer_load_dwordx4 v[{r}:{r+3}], v72, s[52:55], s70 offen {pol}')
    NI = opt.get('NI', 9)
    for x in WQL[:NI]: A(x)
    A(f'''
    s_load_dword s72, s[28:29], 0           ; epoch
    s_mov_b32 s73, 0x05040100
    s_mov_b32 s74, 0x07060302
    s_mov_b32 s75, 0x3db504f3               ; 128^-0.5
    s_mov_b32 s76, 0x3fb8aa3b               ; log2(e)
    s_mov_b32 s77, 0xffff0000
    s_lshl_b32 s78, s30, 24''')
    lin('s80', (65536 - 4096) * 256, [('s30', 0, None, 24), ('s31', 0, None, 14), ('s3', 0, None, 12)])
    srd(36, 16, 17, 's78', 0x1000000); srd(40, 18, 19, 's78', 0x1000000)
    srd(44, 6, 7, 's80', 0x1000); srd(48, 8, 9, 's80', 0x1000)
    srd(64, 28, 29, None, WSSZ)
    lin('s78', 0, [('s33', 0, None, 16), ('s3', 0, None, 14)])
    A('s_add_u32 s56, s56, s78\ns_addc_u32 s57, s57, 0\ns_mov_b32 s58, 0x4000\ns_mov_b32 s59, 0x20000')
    lin('s71', 0, [('s3', 0, None, 13), ('s30', 0, None, ROT)])
    A(f'''
    s_lshl_b32 s82, s31, 15
    s_add_u32 s82, s82, s71
    s_and_b32 s82, s82, 0xffffff
    s_mov_b32 s61, {NS - 2}
    s_lshl_b32 s62, s3, 14
    s_mul_i32 s63, s3, 2080
    s_add_u32 s63, s63, {LWO}
    s_mul_i32 s69, s3, 4352
    s_add_u32 s69, s69, {LOA}''')
    lin('s78', POOL, [('s30', 0, None, 10), ('s3', 0, None, 8)])
    A('s_add_u32 s34, s28, s78\ns_addc_u32 s35, s29, 0')
    lin('s78', IN2, [('s32', 0, None, 16), ('s33', 0, 31 if H2 == 'i' else 24, 11), ('s3', 0, None, 9)])
    A('s_add_u32 s4, s28, s78\ns_addc_u32 s5, s29, 0')
    lin('s12', PART, [('s2', 0, None, 12)])
    if LS: lin('s13', IN1, [('s30', 0, None, 15), ('s3', 0, None, 13), ('s31', 0, None, 6)])
    else: lin('s13', IN1, [('s30', 0, None, 13), ('s3', 0, None, 11), ('s31', 3, None, 7), ('s31', 0, 7, 2)])
    lin('s14', IN3, [('s30', 0, None, 13), ('s3', 0, None, 11), ('s31', 4, None, 7), ('s31', 0, 15, 0)])
    lin('s15', OP, [('s32', 0, None, 19), ('s33', 0, None, 12), ('s3', 0, None, 10)])
    lin('s16', IN2, [('s32', 0, None, 16), ('s3', 0, None, 14), ('s33', 3, None, 7), ('s33', 0, 7, 0)])
    lin('s17', OP, [('s32', 0, None, 19), ('s3', 0, None, 17), ('s33', 0, None, 7)])
    lin('s18', 0, [('s32', 0, None, 11), ('s33', 0, None, 6)])
    A(f'''
    s_movk_i32 s19, 0xff
    s_movk_i32 s20, 0xff00
    v_lshlrev_b32 v15, 2, v8
    v_xor_b32 v15, v15, v9
    v_lshlrev_b32 v15, 4, v15
    v_lshl_add_u32 v160, v8, 8, v15
    v_xor_b32 v161, 16, v160
    v_xor_b32 v162, 32, v160
    v_xor_b32 v163, 48, v160
    v_and_b32 v15, 3, v9
    v_lshrrev_b32 v1, 2, v9
    v_lshl_add_u32 v1, v15, 2, v1
    v_lshlrev_b32 v1, 8, v1
    v_xor_b32 v15, v8, v9
    v_lshl_add_u32 v1, v15, 4, v1
    v_add_u32 v164, s62, v1
    v_xor_b32 v165, 64, v164
    v_xor_b32 v166, 128, v164
    v_xor_b32 v167, 192, v164
    v_and_b32 v15, 7, v9
    v_mul_u32_u24 v10, 272, v15
    v_lshl_add_u32 v10, v8, 4, v10
    v_add_u32 v10, {LQ}, v10
    v_mul_u32_u24 v11, 528, v15
    v_lshl_add_u32 v11, v8, 7, v11
    v_add_u32 v168, s62, v11
    v_add_u32 v11, s69, v11
    v_lshrrev_b32 v15, 5, v0
    s_lshl_b32 s78, s3, 1
    v_add_u32 v15, s78, v15
    v_mul_u32_u24 v12, 528, v15
    v_and_b32 v7, 31, v0
    v_lshl_add_u32 v12, v7, 4, v12
    v_lshlrev_b32 v13, 9, v15
    v_lshl_add_u32 v13, v7, 4, v13
    v_lshlrev_b32 v3, 5, v15
    v_add_u32 v3, {LML}, v3
    v_lshlrev_b32 v169, 5, v0
    s_lshl_b32 s78, s3, 3
    s_add_u32 s78, s78, {LML}
    v_add_u32 v4, s78, v169
    v_mul_u32_u24 v170, 16768, v8
    v_bfe_u32 v15, v0, 2, 2
    v_mul_u32_u24 v15, 2080, v15
    v_add_u32 v170, v170, v15
    v_and_b32 v15, 3, v0
    v_lshl_add_u32 v170, v15, 3, v170
    s_lshl_b32 s78, s3, 9
    s_add_u32 s78, s78, {LWO}
    v_add_u32 v170, s78, v170
    v_lshlrev_b32 v172, 6, v9
    v_lshl_add_u32 v172, v8, 4, v172
    v_lshlrev_b32 v171, 4, v8
    v_add_u32 v171, {LOT}, v171
    v_lshrrev_b32 v173, 3, v0
    v_lshlrev_b32 v173, 12, v173
    v_and_b32 v15, 7, v0
    v_lshl_add_u32 v173, v15, 4, v173
    v_lshlrev_b32 v174, 11, v0
    s_lshl_b32 s78, s3, 7
    s_add_u32 s78, s78, {LF}
    v_add_u32 v175, s78, v2
    v_mov_b32 v14, {LCN}''')
    if LS: A('v_lshrrev_b32 v169, 5, v0\nv_lshlrev_b32 v169, 12, v169\nv_lshl_add_u32 v169, v9, 2, v169')
    def kl(lbase, loff, srdn, soff, n16):
        L = []
        for t in range(n16):
            so = soff if t == 0 else 's70'
            for jj in range(4):
                pre = ''
                if jj == 0:
                    pre = f's_add_u32 m0, {lbase}, {loff + t * 4096}\n'
                    if t == 1: pre += f's_add_u32 s70, {soff}, 4096\n'
                L.append((pre, f'buffer_load_dwordx4 v{160+jj}, {srdn}, {so} offen offset:{jj*1024} {pol} lds'))
        return L
    def vl(dst, srdn, soff, n):
        L = []
        for j in range(n):
            so = soff if j < 4 else 's70'
            r = dst + j * 4
            pre = f's_add_u32 s70, {soff}, 4096\n' if j == 4 else ''
            L.append((pre, f'buffer_load_dwordx4 v[{r}:{r+3}], v2, {srdn}, {so} offen offset:{(j%4)*1024} {pol}'))
        return L
    WL = []
    for e in range(8):
        for hf in range(2):
            pre = f's_add_u32 m0, s63, {(e >> 1) * 16768 + (e & 1) * 8448}\ns_movk_i32 s70, {e * 2048}\n' if hf == 0 else ''
            WL.append((pre, f'buffer_load_dwordx4 v2, s[56:59], s70 offen offset:{hf * 1024} {pol} lds'))
    assert W1 % 2 == 0
    def qset(st):
        T = 48
        src = WQ + st * 32
        xr = 64 + st * 4
        for e in range(9):
            if e < 8: perm(T + (e % 4) * 4, src, e, 4)
            if e >= 1:
                if e == 8: A('s_nop 1')
                t = T + ((e - 1) % 4) * 4
                d = (e - 1) * 4
                c = '0' if st == 0 else f'a[{d}:{d+3}]'
                A(f'v_mfma_f32_16x16x32_bf16 a[{d}:{d+3}], v[{t}:{t+3}], v[{xr}:{xr+3}], {c}')
    for x in WQL[NI:]: A(x)
    if 'ld1' in CS:
        A('s_waitcnt vmcnt(17)'); stamp('ld1')
    stamp('setup')
    A('s_waitcnt vmcnt(8)')
    stamp('w8')
    qset(0)
    LA = kl('s69', 0, 's[44:47]', '0', 1) + vl(144, 's[48:51]', '0', 4)
    D0 = opt.get('D0', D); N0 = opt.get('N0', 0)
    DA = min(D0, 8)
    steps(LA[:DA], D0)
    A(f's_waitcnt vmcnt({DA})')
    qset(1)
    A(f'''
    v_lshlrev_b32 v15, 7, v8
    s_lshl_b32 s78, s3, 9
    s_add_u32 s78, s78, {LQP}
    v_add_u32 v15, s78, v15
    s_mov_b32 exec_lo, 0x00010001
    s_mov_b32 exec_hi, 0x00020002
    s_nop 3''')
    for e in range(8):
        A(f'ds_write_b128 v15, a[{e*4}:{3+e*4}] offset:{e*16}')
    A('''s_mov_b64 exec, -1
    s_waitcnt lgkmcnt(0)
    s_barrier        ; B1
    s_add_u32 s72, s72, 1
    s_and_b32 s83, s72, 0xff
    s_mul_i32 s22, s83, 0x01010101
    s_mov_b32 s23, s22
    v_mov_b32 v1, s83''')
    stamp('b1')
    L1 = kl('s62', 8192, 's[36:39]', 's82', 2)
    L1[0] = ('s_add_u32 s82, s82, 0x200000\ns_and_b32 s82, s82, 0xffffff\n' + L1[0][0], L1[0][1])
    LRA = LA[DA:] + kl('s62', 0, 's[36:39]', 's82', 2) + vl(16, 's[40:43]', 's82', 8) + L1 + vl(48, 's[40:43]', 's82', 8)
    steps(LRA[:N0], D0)
    steps(LRA[N0:QC], D)
    A('s_barrier        ; B1b')
    steps(LRA[QC:], D)
    stamp('preb2')
    A('s_barrier        ; B2')
    stamp('b2')
    ACC, TT, S, U, P = 80, 112, 128, 136, 140
    Q = 64
    def qfrag(br, Q=64):
        for m in range(4):
            A(f'ds_read_b128 a[{Q+m*4}:{Q+m*4+3}], v10 offset:{br*LQB + m*64}')
    def kread(addr, loff, nt):
        for m in range(4):
            for t in range(nt):
                r = t * 16 + m * 4
                A(f'ds_read_b128 a[{r}:{r+3}], v{addr+m} offset:{loff + t * 4096}')
    def qk(nt, Q=64):
        k = 4 * nt
        for m in range(4):
            for t in range(nt):
                k -= 1
                A(f's_waitcnt lgkmcnt({k})')
                c = '0' if m == 0 else f'v[{S+t*4}:{S+t*4+3}]'
                A(f'v_mfma_f32_16x16x32_bf16 v[{S+t*4}:{S+t*4+3}], a[{t*16+m*4}:{t*16+m*4+3}], a[{Q+m*4}:{Q+m*4+3}], {c}')
    def roundscale(nv):
        for k in range(nv // 2): A(f'v_cvt_pk_bf16_f32 v{U+k}, v{S+2*k}, v{S+2*k+1}')
        for k in range(nv // 2):
            A(f'v_lshlrev_b32 v{S+2*k}, 16, v{U+k}\nv_and_b32 v{S+2*k+1}, s77, v{U+k}')
        for k in range(nv): A(f'v_mul_f32 v{S+k}, s75, v{S+k}')
        for k in range(nv // 2): A(f'v_cvt_pk_bf16_f32 v{U+k}, v{S+2*k}, v{S+2*k+1}')
        for k in range(nv // 2):
            A(f'v_lshlrev_b32 v{S+2*k}, 16, v{U+k}\nv_and_b32 v{S+2*k+1}, s77, v{U+k}')
    def exps(nv, first, M=5, L=6):
        A(f'v_mul_f32 v7, s76, v{M}')
        for k in range(nv): A(f'v_fma_f32 v{S+k}, v{S+k}, s76, -v7')
        for k in range(nv): A(f'v_exp_f32 v{S+k}, v{S+k}')
        A('s_nop 0')
        for k in range(nv // 2): A(f'v_cvt_pk_bf16_f32 v{P+k}, v{S+2*k}, v{S+2*k+1}')
        if first:
            A(f'v_add_f32 v{L}, v{S}, v{S+1}')
            for k in range(2, nv): A(f'v_add_f32 v{L}, v{L}, v{S+k}')
        else:
            for k in range(0, nv, 2): A(f'v_add_f32 v{S+k}, v{S+k}, v{S+k+1}')
            for k in range(0, nv, 4): A(f'v_add_f32 v{S+k}, v{S+k}, v{S+k+2}')
            A(f'v_add_f32 v{S}, v{S}, v{S+4}\nv_add_f32 v6, v6, v{S}')
    def pv(vb, half, ACC=80):
        njj = 2 if half else 4
        for e in range(9):
            if e < 8: perm(TT + (e % 4) * 4, vb, e, njj)
            if e >= 1:
                if e == 8: A('s_nop 1')
                elif half: A('s_nop 0')
                t = TT + ((e - 1) % 4) * 4
                d = ACC + (e - 1) * 4
                if half:
                    A(f'v_mfma_f32_16x16x16_bf16 v[{d}:{d+3}], v[{t}:{t+1}], v[{P}:{P+1}], 0')
                else:
                    A(f'v_mfma_f32_16x16x32_bf16 v[{d}:{d+3}], v[{t}:{t+3}], v[{P}:{P+3}], v[{d}:{d+3}]')
    def pub_ml(br, M=5, L=6):
        xg(L, 15, 'v_add_f32')
        A(f's_mov_b64 exec, 0xff\nds_write2_b32 v4, v{M}, v{L} offset0:{br * 64} offset1:{br * 64 + 1}\ns_mov_b64 exec, -1')
    def publish(br, bar, ACC=80):
        A('s_mov_b32 exec_lo, 0x00ff00ff\ns_mov_b32 exec_hi, 0x00ff00ff')
        for e in range(8):
            A(f'ds_write_b128 v{168 if br else 11}, v[{ACC+e*4}:{ACC+e*4+3}] offset:{e*16}')
        A(f's_mov_b64 exec, -1')
        if br == 0: A(f'v_add_u32 v9, {LOA}, v12')
        A(f's_waitcnt lgkmcnt(0)\ns_barrier        ; {bar}')
        stamp('bar' + str(br))
        if br == 1 and RK: A('s_mov_b32 s61, 1\ns_atomic_add s61, s[34:35], 128 glc')
        if br == 1 and EF1: A('s_mov_b64 exec, 1\nbuffer_store_byte v1, off, s[64:67], s14 sc1\ns_mov_b64 exec, -1')
        A(f'ds_read_b128 v[{TT}:{TT+3}], v3 offset:{br*256}\nds_read_b128 v[{TT+4}:{TT+7}], v3 offset:{br*256+16}')
        for w in range(4):
            A(f'ds_read_b128 v[{ACC+w*4}:{ACC+w*4+3}], v{12 if br else 9} offset:{w * (16384 if br else 4352)}')
        m = [TT, TT + 2, TT + 4, TT + 6]; l = [TT + 1, TT + 3, TT + 5, TT + 7]
        R = S
        if br: A(f's_add_u32 s12, s12, 0x100000\ns_add_u32 s13, s13, {0x20000 if LS else 0x8000}')
        A(f'''
    s_waitcnt lgkmcnt(4)
    v_max3_f32 v{U}, v{m[0]}, v{m[1]}, v{m[2]}
    v_max_f32 v{U}, v{U}, v{m[3]}
    v_mul_f32 v7, s76, v{U}''')
        for w in range(4): A(f'v_fma_f32 v{m[w]}, v{m[w]}, s76, -v7')
        for w in range(4): A(f'v_exp_f32 v{m[w]}, v{m[w]}')
        A(f'v_mul_f32 v{U+1}, v{m[0]}, v{l[0]}')
        for w in range(1, 4): A(f'v_fmac_f32 v{U+1}, v{m[w]}, v{l[w]}')
        A(f'v_rcp_f32 v{U+2}, v{U+1}\nv_log_f32 v{U+3}, v{U+1}')
        A('s_waitcnt lgkmcnt(0)')
        for k in (0, 2): A(f'v_pk_mul_f32 v[{R+k}:{R+k+1}], v[{ACC+k}:{ACC+k+1}], v[{m[0]}:{m[0]+1}] op_sel_hi:[1,0]')
        for w in range(1, 4):
            for k in (0, 2): A(f'v_pk_fma_f32 v[{R+k}:{R+k+1}], v[{ACC+w*4+k}:{ACC+w*4+k+1}], v[{m[w]}:{m[w]+1}], v[{R+k}:{R+k+1}] op_sel_hi:[1,0,1]')
        A(f'v_add_f32 v{U+3}, v{U+3}, v7')
        for k in (0, 2): A(f'v_pk_mul_f32 v[{R+k}:{R+k+1}], v[{R+k}:{R+k+1}], v[{U+2}:{U+3}] op_sel_hi:[1,0]')
        A(f'v_add_u32 v{U+3}, 0x80, v{U+3}')
        for r in (R, R + 1, R + 2, R + 3, U + 3): A(f'v_bfi_b32 v{r}, s19, v1, v{r}')
        if br == 0 and opt.get('noas'): return
        A(f'''
    buffer_store_dwordx4 v[{R}:{R+3}], v13, s[64:67], s12 offen sc1
    s_mov_b32 exec_lo, {0xffff if LS else 1}
    s_mov_b32 exec_hi, {0xffff if LS else 1}
    buffer_store_dword v{U+3}, v169, s[64:67], s13 offen sc1''')
        if br == 1 and not EF1: A('s_mov_b64 exec, 1\nbuffer_store_byte v1, off, s[64:67], s14 sc1')
        A('s_mov_b64 exec, -1')
    AL = opt.get('al', 1)
    def atile(acc, M, L, Q):
        qfrag(0, Q)
        A('s_sub_u32 s78, s69, s62')
        for m in range(4): A(f'v_add_u32 v{TT+m}, s78, v{164+m}')
        A('s_waitcnt vmcnt(32)')
        kread(TT, 0, 1)
        qk(1, Q)
        A('s_nop 7')
        roundscale(4)
        A(f'v_max3_f32 v{M}, v{S}, v{S+1}, v{S+2}\nv_max_f32 v{M}, v{M}, v{S+3}')
        xg(M, 15, 'v_max_f32')
        exps(4, True, M, L)
        pv(144, True, acc)
        pub_ml(0, M, L)
        publish(0, 'B3a', acc)
    if not AL: atile(80, 5, 6, 64)
    qfrag(1)
    for k in range(0, 32, 2): A(f'v_mov_b64 v[{ACC+k}:{ACC+k+1}], 0')
    A('v_mov_b32 v5, 0xff7fffff\nv_mov_b32 v6, 0\ns_mov_b32 s81, 0\ns_mov_b32 s68, 0')
    A('s_cmp_ge_u32 s33, 32\ns_cbranch_scc1 L_nowarm')
    for k in range(4): A(f's_load_dword s{6+k}, s[4:5], {128*k} glc')
    A('L_nowarm:')
    stamp('loop')
    if stamps: A('s_mov_b32 s80, 0')
    D1 = opt.get('D1', 8)
    for b in range(2):
        vb = 16 + b * 32
        A(f'L_top{b}:')
        if stamps: A('s_add_u32 s80, s80, 1')
        A(f'''s_cmp_lt_u32 s81, 2
    s_waitcnt vmcnt(24)
    s_cbranch_scc1 L_w1{b}
    s_cmp_eq_u32 s68, 0
    s_waitcnt vmcnt(8)
    s_cbranch_scc1 L_w1{b}
    s_waitcnt vmcnt(4)
L_w1{b}:''')
        kread(164, b * 8192, 2)
        qk(2)
        A('s_nop 7')
        roundscale(8)
        A(f's_cmp_eq_u32 s68, 0\ns_cbranch_scc1 L_full{b}')
        for k in range(4, 8): A(f'v_mov_b32 v{S+k}, 0xff800000')
        A(f'L_full{b}:')
        A(f'v_max3_f32 v8, v{S}, v{S+1}, v5\nv_max3_f32 v9, v{S+2}, v{S+3}, v{S+4}\nv_max3_f32 v8, v8, v{S+5}, v{S+6}\nv_max3_f32 v8, v8, v9, v{S+7}')
        xg(8, 15, 'v_max_f32')
        A(f'''
    v_cmp_gt_f32 vcc, v8, v5
    s_cbranch_vccz L_nors{b}
    v_sub_f32 v9, v5, v8
    v_mul_f32 v9, s76, v9
    v_exp_f32 v9, v9
    v_mov_b32 v5, v8
    v_mul_f32 v6, v6, v9''')
        for k in range(32): A(f'v_mul_f32 v{ACC+k}, v{ACC+k}, v9')
        A(f'L_nors{b}:')
        exps(8, False)
        KL = kl('s62', b * 8192, 's[36:39]', 's82', 2)
        VL = vl(vb, 's[40:43]', 's82', 8)
        A(f'''
    s_cmp_lg_u32 s81, 0
    s_cbranch_scc1 L_s1d{b}
    s_sub_u32 s61, s61, 1
    s_cbranch_scc1 L_s1t{b}
    s_add_u32 s82, s82, 0x200000
    s_and_b32 s82, s82, 0xffffff''')
        steps(KL, DL)
        A(f'L_s1r{b}:\ns_waitcnt vmcnt(16)\nL_pv{b}:')
        pv(vb, False)
        A(f's_cmp_lg_u32 s81, 0\ns_cbranch_scc1 L_s2d{b}')
        steps(VL, DL)
        if b == 1: A('s_branch L_top0')
    for b in range(2):
        vb = 16 + b * 32
        KL = kl('s62', b * 8192, 's[36:39]', 's82', 2)
        VL = vl(vb, 's[40:43]', 's82', 8)
        A(f'''L_s1t{b}:
    s_mov_b32 s81, 1
    s_branch L_s1r{b}
L_s1d{b}:
    s_waitcnt lgkmcnt(0)
    s_add_u32 s82, s60, {64 * NS}
    s_lshl_b32 s82, s82, 1
    s_cmp_lt_u32 s60, {NF}
    s_cbranch_scc1 L_fullc{b}
    s_add_u32 s82, s60, {128 * NS + NF}
    s_cmp_ge_u32 s82, 1024
    s_cbranch_scc1 L_last{b}
    s_mov_b32 s68, 1
L_fullc{b}:
    s_and_b32 s78, s82, 1
    s_lshr_b32 s82, s82, 1
    s_lshl_b32 s82, s82, 3
    s_add_u32 s82, s82, s78
    s_lshl_b32 s82, s82, 12
    s_add_u32 s82, s82, s71
    s_and_b32 s82, s82, 0xffffff''')
        steps(KL[:4], D1)
        A(f's_cmp_eq_u32 s68, 0\ns_cbranch_scc1 L_k2{b}\ns_waitcnt vmcnt(4)\ns_branch L_pv{b}\nL_k2{b}:')
        steps(KL[4:], D1)
        A(f's_waitcnt vmcnt(8)\ns_branch L_pv{b}')
        A(f'L_last{b}:')
        stamp('none')
        A('s_mov_b32 s81, 3')
        pub_ml(1)
        steps(WL[:W1], DW); A(f's_waitcnt vmcnt({W1})\ns_branch L_pv{b}')
        A(f'''L_s2d{b}:
    s_cmp_eq_u32 s81, 2
    s_cbranch_scc1 L_s2m{b}
    s_cmp_eq_u32 s81, 3
    s_cbranch_scc1 L_exit
    s_mov_b32 s81, 2''')
        if AL and b == (NS & 1):
            A('s_barrier        ; B2a')
            atile(vb, 8, S + 4, 32)
        A(f'''s_mov_b32 s60, 1
    s_atomic_add s60, s[34:35], 0 glc
    s_branch L_top{b ^ 1}
L_s2m{b}:''')
        steps(VL[:4], D1)
        A(f's_mov_b32 s60, 1\ns_atomic_add s60, s[34:35], 0 glc\ns_cmp_eq_u32 s68, 0\ns_cbranch_scc0 L_top{b}')
        steps(VL[4:], D1)
        A(f's_branch L_top{b}')
    A('L_exit:')
    stamp('vlast'); cstamp('ctiles', 's80')
    publish(1, 'B3')
    stamp('pub')
    if RK:
        A(f's_waitcnt lgkmcnt(0)\ns_cmp_lt_u32 s61, {RK}\ns_cbranch_scc1 L_woslow')
        if opt.get('rk2'):
            A(f's_cmp_lt_u32 s61, {opt["rk2"]}\ns_cbranch_scc1 L_womid')
        steps(WL[W1:], 16)
        A('s_branch L_wodone')
        if opt.get('rk2'):
            A('L_womid:'); steps(WL[W1:], opt.get('DM', 6) + 3); A('s_branch L_wodone')
        A('L_woslow:')
        n = opt.get('NSL', 16)
        steps(WL[W1:W1 + 3], DW2 + 3); steps(WL[W1 + 3:], DW2)
        A('L_wodone:')
    else:
        steps(WL[W1:], DW2 + 3)
    FX = '0xff' if H2 == 'i' else '1'
    if opt.get('gv', 1) == 0:
        for k in range(64): A(f'v_accvgpr_write_b32 a{k}, 0')
        A('''v_mov_b32 v15, 1
        s_waitcnt vmcnt(0)
        s_mov_b64 exec, 1
        ds_add_u32 v14, v15
        s_mov_b64 exec, -1
    L_wosp:
        ds_read_b32 v15, v14
        s_waitcnt lgkmcnt(0)
        v_cmp_gt_u32 vcc, 4, v15
        s_cbranch_vccnz L_wosp''')
        stamp('wo')
        for x in range(16):
            for h in range(2):
                r = 16 + x * 4 + h * 2
                A(f'ds_read_b64_tr_b16 v[{r}:{r+1}], v170 offset:{x * 32 + h * 8448}')
        A('s_mov_b32 s52, s24\ns_mov_b32 s53, s25\ns_movk_i32 s54, 0x1000\ns_mov_b32 s55, 0x20000\ns_mov_b32 s81, 0')
        FX = '0xff' if H2 == 'i' else '1'
        if EF2:
            A(f's_mov_b64 exec, {FX}\ns_waitcnt lgkmcnt(0)\ns_barrier        ; B4\nbuffer_store_byte v1, v174, s[64:67], s16 offen sc1\ns_mov_b32 exec_lo, 0x00010001\ns_mov_b32 exec_hi, 0x00010001')
        else:
            A('s_mov_b32 exec_lo, 0x00010001\ns_mov_b32 exec_hi, 0x00010001\ns_waitcnt lgkmcnt(0)\ns_barrier        ; B4')
        LAG = 4
        def gm(y):
            c = '0' if y < 2 else f'v[{80 + (y & 1) * 4}:{83 + (y & 1) * 4}]'
            A(f'v_mfma_f32_16x16x32_bf16 v[{80 + (y & 1) * 4}:{83 + (y & 1) * 4}], v[{16+y*4}:{19+y*4}], a[{y*4}:{y*4+3}], {c}')
        for x in range(16):
            A(f'ds_read_b128 a[{x*4}:{x*4+3}], v171')
            A('s_lshl_b64 exec, exec, 1' if x < 15 else 's_mov_b64 exec, -1')
            if x >= LAG:
                A(f's_waitcnt lgkmcnt({LAG})')
                if x == LAG: stamp('b4')
                gm(x - LAG)
        for y in range(16 - LAG, 16):
            A(f's_waitcnt lgkmcnt({15 - y})'); gm(y)
        A('s_nop 7\nv_pk_add_f32 v[80:81], v[80:81], v[84:85]\nv_pk_add_f32 v[82:83], v[82:83], v[86:87]')
        for k in range(4): A(f'v_bfi_b32 v{80+k}, s19, v1, v{80+k}')
        A('buffer_store_dwordx4 v[80:83], v172, s[64:67], s15 offen sc1')
    else:
        A('s_mov_b32 s52, s24\ns_mov_b32 s53, s25\ns_movk_i32 s54, 0x1000\ns_mov_b32 s55, 0x20000\ns_mov_b32 s81, 0')
        A('v_lshrrev_b32 v8, 4, v0\nv_and_b32 v9, 15, v0\nv_lshlrev_b32 v172, 8, v8\nv_lshl_add_u32 v172, v9, 2, v172')
        A(f's_mov_b64 exec, {FX if EF2 else -1}\ns_waitcnt vmcnt(0)')
        stamp('wo')
        A('s_barrier        ; B4')
        if EF2: A('buffer_store_byte v1, v174, s[64:67], s16 offen sc1\ns_mov_b64 exec, -1')
        def tr(x):
            for h in range(2):
                r = 16 + x * 4 + h * 2
                A(f'ds_read_b64_tr_b16 v[{r}:{r+1}], v170 offset:{x * 32 + h * 8448}')
        def gm2(x): A(f'v_mfma_f32_16x16x32_bf16 v[{80+x*4}:{83+x*4}], v[148:151], v[{16+x*4}:{19+x*4}], 0')
        def sel(g):
            A('s_mov_b64 exec, 0xffff' if g == 0 else 's_lshl_b64 exec, exec, 16')
            if g == 3: A('s_nop 1')
            for r in range(4): A(f'v_bfi_b32 v{144+r}, s19, v1, v{80+(4*g+r)*4}')
        A('ds_read_b128 v[148:151], v171')
        for x in range(4): tr(x)
        for x in range(12):
            tr(x + 4); A('s_waitcnt lgkmcnt(8)')
            if x == 0: stamp('b4')
            gm2(x)
        for x in range(12, 16):
            A(f's_waitcnt lgkmcnt({2 * (15 - x)})'); gm2(x)
            if x < 14: sel(x - 12)
        sel(2); sel(3)
        A('s_mov_b64 exec, -1')
        for r in range(4): A(f'buffer_store_dword v{144+r}, v172, s[64:67], s15 offen offset:{64*r} sc1')
    if not EF2: A(f's_mov_b64 exec, {FX}\nbuffer_store_byte v1, v174, s[64:67], s16 offen sc1\ns_mov_b64 exec, -1')
    stamp('end')
    if opt.get('nosync'): A('s_branch L_fin')
    A(f'''s_cmp_ge_u32 s33, 32
    s_cbranch_scc1 L_fin
L_ofpoll:
    s_load_dwordx2 s[40:41], s[4:5], 0 glc
    s_load_dwordx2 s[42:43], s[4:5], 128 glc
    s_load_dwordx2 s[44:45], s[4:5], 256 glc
    s_load_dwordx2 s[46:47], s[4:5], 384 glc
    s_add_u32 s81, s81, 1
    s_cmp_gt_u32 s81, {SPIN}
    s_cbranch_scc1 L_fgather
    s_waitcnt lgkmcnt(0)
    s_xor_b64 s[40:41], s[40:41], s[22:23]
    s_xor_b64 s[42:43], s[42:43], s[22:23]
    s_xor_b64 s[44:45], s[44:45], s[22:23]
    s_xor_b64 s[46:47], s[46:47], s[22:23]
    s_or_b64 s[40:41], s[40:41], s[42:43]
    s_or_b64 s[44:45], s[44:45], s[46:47]
    s_or_b64 s[40:41], s[40:41], s[44:45]
    s_cbranch_scc1 L_ofpoll''')
    stamp('fpre')
    A('L_fgather:')
    for i in range(4):
        r = 16 + i * 4
        if i == 0: A(f'buffer_load_dwordx4 v[{r}:{r+3}], v173, s[64:67], s17 offen sc1')
        else: A(f's_add_u32 s79, s17, {i * 8 * 4096}\nbuffer_load_dwordx4 v[{r}:{r+3}], v173, s[64:67], s79 offen sc1')
    A(f's_add_u32 s81, s81, 1\nv_lshlrev_b32 v10, 3, v0\nv_add_u32 v10, {LF}, v10\nv_lshlrev_b32 v11, 2, v0\nv_mov_b32 v40, s72')
    for i in range(4):
        r = 16 + i * 4
        A(f's_waitcnt vmcnt({3 - i})')
        for k in range(4):
            if i == 0 and k < 2: A(f'v_xor_b32 v{8+k}, s83, v{r+k}')
            else: A(f'v_bitop3_b32 v{8 + (k & 1)}, v{8 + (k & 1)}, v{r+k}, s83 bitop3:0xf6')
        for k in range(4): A(f'v_and_b32 v{r+k}, s20, v{r+k}')
        if i: A(f'v_pk_add_f32 v[16:17], v[16:17], v[{r}:{r+1}]\nv_pk_add_f32 v[18:19], v[18:19], v[{r+2}:{r+3}]')
    A(f'''v_or_b32 v8, v8, v9
    v_and_b32 v8, s19, v8
    v_cmp_ne_u32 vcc, 0, v8
    s_cbranch_vccz L_fok
    s_cmp_gt_u32 s81, {SPIN}
    s_cbranch_scc0 L_fgather
L_fok:''')
    stamp('fok'); cstamp('cf', 's81')
    for k in range(4): A(f'v_add_f32_dpp v{16+k}, v{16+k}, v{16+k} row_ror:8 row_mask:0xf bank_mask:0xf')
    xg4([16, 17, 18, 19], [20, 21, 22, 23], 'v_add_f32')
    A(f'''s_mov_b64 exec, 0xff
    ds_write_b128 v175, v[16:19]
    s_mov_b64 exec, 0xffff
    s_cmp_eq_u32 s3, 0
    s_waitcnt lgkmcnt(0)
    s_barrier        ; B5
    s_cbranch_scc0 L_fin
    ds_read_b64 v[16:17], v10
    ds_read_b64 v[18:19], v10 offset:128
    ds_read_b64 v[20:21], v10 offset:256
    ds_read_b64 v[22:23], v10 offset:384
    s_cmp_eq_u32 s2, 0
    s_waitcnt lgkmcnt(2)
    v_pk_add_f32 v[16:17], v[16:17], v[18:19]
    s_waitcnt lgkmcnt(0)
    v_pk_add_f32 v[20:21], v[20:21], v[22:23]
    v_pk_add_f32 v[16:17], v[16:17], v[20:21]
    v_cvt_pk_bf16_f32 v16, v16, v17
    buffer_store_dword v16, v11, s[52:55], s18 offen
    s_cbranch_scc0 L_noep
    s_mov_b64 exec, 1
    buffer_store_dword v40, off, s[64:67], 0 sc1
L_noep:''')
    stamp('fin')
    A('s_branch L_fin')
    A('L_sync:')
    insync[0] = 1
    A(f"s_setprio {opt.get('prio', 3)}")
    A(f'''v_mov_b32 v16, 0
    v_mov_b32 v20, {LCN}
    ds_write_b32 v20, v16''')
    if opt.get('nosync'):
        A('s_waitcnt lgkmcnt(0)\n' + 's_barrier\n' * (7 if opt.get('al', 1) else 6) + 's_branch L_fin')
    A('s_waitcnt lgkmcnt(0)\ns_load_dword s72, s[28:29], 0')

    if opt.get('tlb'):
        A('s_lshl_b32 s78, s30, 24')
        srd(36, 16, 17, 's78', 0x1000000); srd(40, 18, 19, 's78', 0x1000000)
        A('''s_cmp_eq_u32 s32, 0
    s_cselect_b32 s56, s12, s22
    s_cselect_b32 s57, s13, s23
    s_mov_b32 s58, 0x800000
    s_mov_b32 s59, 0x20000
    s_lshl_b32 s78, s31, 15
    s_lshl_b32 s79, s33, 16
    v_lshlrev_b32 v21, 21, v0
    s_mov_b64 exec, 0xff
    buffer_load_dword v22, v21, s[36:39], s78 offen nt
    buffer_load_dword v23, v21, s[40:43], s78 offen nt
    s_mov_b64 exec, 1
    buffer_load_dword v24, v21, s[56:59], s79 offen nt
    s_mov_b64 exec, -1''')
    srd(64, 28, 29, None, WSSZ)
    A(f'''
    s_movk_i32 s77, 0xff00                  ; 0xffffff00
    s_movk_i32 s75, 0xff
    s_and_b32 s36, s33, 0x4f
    s_xor_b32 s37, s32, 1
    s_or_b32 s36, s36, s37
    s_cbranch_scc1 L_nopool
    s_bfe_u32 s36, s33, 0x20004
    s_lshl_b32 s36, s36, 10
    s_add_u32 s36, s36, {POOL}
    v_lshlrev_b32 v3, 7, v0
    s_mov_b64 exec, 0xff
    buffer_store_dword v16, v3, s[64:67], s36 offen sc1
    s_mov_b64 exec, -1
    s_waitcnt vmcnt(0)
L_nopool:
    v_lshrrev_b32 v3, 5, v0
    v_lshlrev_b32 v3, 5, v3
    v_and_b32 v15, 3, v0
    v_lshl_add_u32 v3, v15, 3, v3
    v_bfe_u32 v15, v0, 2, 3
    v_add_u32 v3, v3, v15
    v_lshlrev_b32 v3, 2, v3
    v_lshlrev_b32 v4, 2, v0
    v_add_u32 v4, {LQP}, v4
    v_lshrrev_b32 v5, 5, v0
    v_mul_u32_u24 v5, 272, v5
    v_and_b32 v15, 31, v0
    v_lshl_add_u32 v5, v15, 3, v5
    v_add_u32 v5, {LQ}, v5''')
    lin('s78', QP, [('s32', 0, None, 15), ('s33', 6, None, 14), ('s33', 0, 63, 8)])
    lin('s80', QP, [('s30', 0, None, 12)])
    A(f'''
    s_waitcnt lgkmcnt(0)
    s_add_u32 s72, s72, 1
    s_and_b32 s74, s72, 0xff
    s_mul_i32 s82, s74, 0x01010101
    s_mov_b32 s83, s82
    v_mov_b32 v1, s74
    s_barrier        ; B1''')
    stamp('b1')
    for k in range(8): A(f'ds_read_b32 v{16+k}, v4 offset:{k*256}')
    A(f'''
    s_waitcnt lgkmcnt(0)
    v_add_f32 v16, v16, v17
    v_add_f32 v18, v18, v19
    v_add_f32 v20, v20, v21
    v_add_f32 v22, v22, v23
    v_add_f32 v16, v16, v18
    v_add_f32 v20, v20, v22
    v_add_f32 v24, v16, v20
    v_add_u32 v24, 0x80, v24
    v_bfi_b32 v24, s75, v1, v24
    buffer_store_dword v24, v3, s[64:67], s78 offen sc1
    s_mov_b32 s81, 0
    s_barrier        ; B1b''')
    stamp('qpre')
    def verdict(ok, retry):
        A(f'''v_or_b32 v10, v10, v11
    v_and_b32 v10, s75, v10
    v_cmp_ne_u32 vcc, 0, v10
    s_cbranch_vccz {ok}
    s_cmp_gt_u32 s81, {SPIN}
    s_cbranch_scc0 {retry}
{ok}:''')
    def qloads(br):
        for half in range(2):
            A(f's_add_u32 s70, s80, {br * 0x8000 + half * 0x4000}')
            for i in range(4):
                r = 16 + (br * 8 + half * 4 + i) * 4
                A(f'buffer_load_dwordx4 v[{r}:{r+3}], v2, s[64:67], s70 offen offset:{i*1024} sc1')
    def qcheck(r0, n):
        A(f'v_xor_b32 v10, s74, v{r0}\nv_xor_b32 v11, s74, v{r0+1}')
        for k, r in enumerate(range(r0 + 2, r0 + n)): A(f'v_bitop3_b32 v{10 + (k & 1)}, v{10 + (k & 1)}, v{r}, s74 bitop3:0xf6')
    def qconv(br):
        for r in range(16 + br * 32, 48 + br * 32): A(f'v_and_b32 v{r}, s77, v{r}')
        for i in range(4):
            r = 16 + (br * 8 + i) * 4
            A(f'v_pk_add_f32 v[{r}:{r+1}], v[{r}:{r+1}], v[{r+16}:{r+17}]\nv_pk_add_f32 v[{r+2}:{r+3}], v[{r+2}:{r+3}], v[{r+18}:{r+19}]')
            A(f'v_cvt_pk_bf16_f32 v{r}, v{r}, v{r+1}\nv_cvt_pk_bf16_f32 v{r+1}, v{r+2}, v{r+3}')
            A(f'ds_write_b64 v5, v[{r}:{r+1}] offset:{br*LQB + i*2*272}')
    f, g2 = (1, 0) if AL else (0, 1)
    qloads(f); qloads(g2)
    A('s_waitcnt vmcnt(8)\nL_qa:'); qcheck(16 + 32 * f, 32)
    A('s_add_u32 s81, s81, 1')
    verdict('L_qaok', 'L_qar')
    qconv(f)
    stamp('qgat'); cstamp('cqgat', 's81')
    A('s_waitcnt lgkmcnt(0)\ns_barrier        ; B2')
    A('s_waitcnt vmcnt(0)\nL_qb:'); qcheck(16 + 32 * g2, 32)
    A('s_add_u32 s81, s81, 1')
    verdict('L_qbok', 'L_qbr')
    qconv(g2)
    A('s_branch L_qdone\nL_qar:'); qloads(f); A('s_waitcnt vmcnt(0)\ns_branch L_qa')
    A('L_qbr:'); qloads(g2); A('s_waitcnt vmcnt(0)\ns_branch L_qb\nL_qdone:\ns_waitcnt lgkmcnt(0)')
    if AL: A('s_barrier        ; B2a')
    A('s_barrier        ; B3a')
    lin('s78', PART, [('s32', 0, None, 20), ('s33', 5, None, 18), ('s33', 0, 31, 7)])
    lin('s79', IN1, [('s32', 0, None, 17 if LS else 15), ('s33', 2, None, 12 if LS else 10)])
    lin('s80', IN3, [('s33', 3, None, 11)])
    A(f'''
    s_add_u32 s38, s28, s80
    s_addc_u32 s39, s29, 0
    s_add_u32 s36, s28, s79
    s_addc_u32 s37, s29, 0
    v_lshrrev_b32 v15, 3, v0
    v_lshlrev_b32 v5, 12, v15
    v_and_b32 v13, 7, v0
    v_lshl_add_u32 v5, v13, 4, v5           ; (l>>3)*4096 + (l&7)*16
    v_lshlrev_b32 v14, 7, v15
    v_lshl_add_u32 v14, v13, 2, v14         ; (l>>3)*128 + (l&7)*4
    v_lshlrev_b32 v3, 3, v0
    v_add_u32 v3, {LOT}, v3
    v_lshlrev_b32 v6, 5, v13
    v_lshl_add_u32 v6, v15, 2, v6
    v_add_u32 v6, {LW}, v6
    v_lshlrev_b32 v7, 5, v15
    v_add_u32 v7, {LW}, v7
    {'v_lshlrev_b32 v14, 6, v0' if LS else ''}
    s_mov_b32 s81, 0
    s_cmp_eq_u32 s32, 0
    s_cbranch_scc1 L_nowarm1''')
    for k in range(4): A(f's_load_dword s{40+k}, s[38:39], {128*k} glc')
    if not LS:
        for k in range(8): A(f's_load_dword s{48+k}, s[36:37], {128*k} glc')
    A('L_nowarm1:\ns_waitcnt lgkmcnt(0)')
    if AGM: A('s_barrier        ; B3c\ns_cmp_eq_u32 s32, 0\ns_cbranch_scc1 L_pgather\ns_barrier        ; B3')
    else: A('s_barrier        ; B3')
    stamp('pgs')
    A(f"s_cmp_eq_u32 s32, 0\ns_cbranch_scc1 {'L_pok' if opt.get('noag') else 'L_pgather'}\nL_sppoll:")
    if opt.get('nobp'): A('s_branch L_pok')
    for k in range(4): A(f's_load_dwordx4 s[{40+4*k}:{43+4*k}], s[38:39], {128*k} glc')
    A(f's_add_u32 s81, s81, 1\ns_cmp_gt_u32 s81, {SPIN}\ns_cbranch_scc1 L_pgather\ns_waitcnt lgkmcnt(0)')
    regs = list(range(40, 56, 2))
    for r in regs: A(f's_xor_b64 s[{r}:{r+1}], s[{r}:{r+1}], s[82:83]')
    while len(regs) > 1:
        nr = []
        for a, b in zip(regs[0::2], regs[1::2]):
            A(f's_or_b64 s[{a}:{a+1}], s[{a}:{a+1}], s[{b}:{b+1}]'); nr.append(a)
        regs = nr
    A('s_cbranch_scc1 L_sppoll')
    stamp('ppre')
    if opt.get('nobg'): A('s_branch L_pok')
    A('L_pgather:')
    A('buffer_load_dword v12, v14, s[64:67], s79 offen sc1')
    for i in range(8):
        r = 16 + i * 4
        if i == 0: A(f'buffer_load_dwordx4 v[{r}:{r+3}], v5, s[64:67], s78 offen sc1')
        else: A(f's_add_u32 s70, s78, {i * 8 * 4096}\nbuffer_load_dwordx4 v[{r}:{r+3}], v5, s[64:67], s70 offen sc1')
    def allred(reg, tmp, op):
        for n in (1, 2, 4, 8):
            A(f's_nop 1\n{op}_dpp v{reg}, v{reg}, v{reg} row_ror:{n} row_mask:0xf bank_mask:0xf')
        xg(reg, tmp, op)
    A('s_add_u32 s81, s81, 1\ns_waitcnt vmcnt(8)\nv_and_b32 v48, s77, v12\nv_xor_b32 v10, s74, v12\nv_mov_b32 v50, v48\nv_mov_b32 v11, 0')
    allred(50, 51, 'v_max_f32')
    A(f'''
    v_sub_f32 v48, v48, v50
    v_exp_f32 v49, v48
    s_nop 0
    ds_write_b32 v6, v49
    s_waitcnt lgkmcnt(0)
    ds_read_b128 v[52:55], v7
    ds_read_b128 v[56:59], v7 offset:16''')
    allred(49, 51, 'v_add_f32')
    A('v_rcp_f32 v68, v49\ns_waitcnt lgkmcnt(0)')
    for i in range(8):
        r = 16 + 4 * i
        A(f's_waitcnt vmcnt({7 - i})')
        for k in range(4): A(f'v_bitop3_b32 v{10 + (k & 1)}, v{10 + (k & 1)}, v{r+k}, s74 bitop3:0xf6')
        for k in range(4): A(f'v_and_b32 v{r+k}, s77, v{r+k}')
        wp = 52 + (i & ~1); sel = i & 1
        for k in (0, 2):
            if i == 0: A(f'v_pk_mul_f32 v[{60+k}:{61+k}], v[{r+k}:{r+k+1}], v[{wp}:{wp+1}] op_sel_hi:[1,0]')
            else: A(f'v_pk_fma_f32 v[{60+k}:{61+k}], v[{r+k}:{r+k+1}], v[{wp}:{wp+1}], v[{60+k}:{61+k}] op_sel:[0,{sel},0] op_sel_hi:[1,{sel},1]')
    verdict('L_pok', 'L_pgather')
    stamp('pgok'); cstamp('cpg', 's81')
    for k in range(4): A(f'v_add_f32_dpp v{60+k}, v{60+k}, v{60+k} row_ror:8 row_mask:0xf bank_mask:0xf')
    xg4([60, 61, 62, 63], [64, 65, 66, 67], 'v_add_f32')
    A(f'''v_pk_mul_f32 v[60:61], v[60:61], v[68:69] op_sel_hi:[1,0]
    v_pk_mul_f32 v[62:63], v[62:63], v[68:69] op_sel_hi:[1,0]
    s_mov_b64 exec, 0xff
    v_cvt_pk_bf16_f32 v60, v60, v61
    v_cvt_pk_bf16_f32 v61, v62, v63
    ds_write_b64 v3, v[60:61]''')
    if AGM: A('s_cmp_eq_u32 s32, 0\ns_cbranch_scc0 L_nob3\ns_barrier        ; B3 (A role)\nL_nob3:')
    A('s_waitcnt lgkmcnt(0)\ns_barrier        ; B4')
    stamp('b4')
    A('L_fin:')
    if opt.get('holdat'):
        A('''s_cmp_eq_u32 s99, 0
    s_cbranch_scc1 L_nohold
L_hold2:
    s_memrealtime s[86:87]
    s_waitcnt lgkmcnt(0)
    s_sub_u32 s86, s86, s84
    s_cmp_lt_u32 s86, 3000
    s_cbranch_scc1 L_hold2
L_nohold:''')
    if stamps:
        A('s_waitcnt vmcnt(0) lgkmcnt(0)\ns_mov_b64 exec, 1')
        for k in range(16): A(f'v_mov_b32 v{16+k}, s{84+k}')
        A(f'''
    s_mul_i32 s78, s100, 5
    s_add_u32 s78, s78, s101
    s_lshl_b32 s78, s78, 6
    s_add_u32 s78, s78, {STAMP}
    v_mov_b32 v1, s78''')
        for k in range(4): A(f'global_store_dwordx4 v1, v[{16+4*k}:{19+4*k}], s[28:29] offset:{16*k}')
    A('''
L_end:
    s_endpgm
.section .rodata,"a"
.p2align 6
''')
    A(kdesc(name, 256, 102, 176).replace('.end_amdhsa', '  .amdhsa_float_denorm_mode_32 3\n.end_amdhsa'))
    t = A.text()
    if opt.get('nost'):
        t = '\n'.join(('s_nop 0' if 'buffer_store' in l else l) for l in t.split('\n'))
    open(fn, 'w').write(t)

if __name__ == '__main__':
    for spec in sys.argv[1:]:
        fn, _, o = spec.partition(':')
        opt = {}
        for kv in filter(None, o.split(',')):
            k, _, v = kv.partition('=')
            try: v = int(v, 0)
            except ValueError: v = v.replace('+', ' ')
            opt[k] = v
        gen(fn, opt)
```
